```python
import torch

def _softmax(x, axis=-1):
    return torch.softmax(x, dim=axis)
def _gelu(x):
    return torch.nn.functional.gelu(x, approximate="tanh")
def _silu(x):
    return torch.nn.functional.silu(x)
def _sigmoid(x):
    return torch.sigmoid(x)
def _layernorm(x, axis=-1, eps=1e-5):
    m = x.mean(dim=axis, keepdim=True)
    v = x.var(dim=axis, keepdim=True, unbiased=False)
    return (x - m) / torch.sqrt(v + eps)
def _scatter_add(tgt, idx, src, axis=0):
    return tgt.clone().index_add_(axis, idx, src)
def _segment_sum(src, seg, n):
    out = torch.zeros((n,) + src.shape[1:], dtype=src.dtype)
    return out.index_add_(0, seg, src)
def _pad(x, pw):
    flat = tuple(v for pair in reversed(pw) for v in pair)
    return torch.nn.functional.pad(x, flat)

kernel_name = 'sequential_preLN__ssm_conv_h3__mixer_s_mlp__prompt'

def setup_inputs():

    _w = (lambda a: (lambda t: t.to(torch.bfloat16) if t.is_floating_point() else t)(torch.as_tensor(a)))
    def _A_setup():
        B, S, D = 1, 2048, 512
        ks = 4
        return {
            "q": _w((lambda *s: torch.randn(*s, dtype=torch.bfloat16) * 0.05)(B, S, D)),
            "k": _w((lambda *s: torch.randn(*s, dtype=torch.bfloat16) * 0.4)(B, S, D)),
            "v": _w((lambda *s: torch.randn(*s, dtype=torch.bfloat16) * 0.4)(B, S, D)),
            "shift_k": _w((lambda *s: torch.randn(*s, dtype=torch.bfloat16) * 0.4)(D, ks) * 0.5),
            "ssm_k": _w((lambda *s: torch.randn(*s, dtype=torch.bfloat16) * 0.4)(D, S) * (1.0 / S ** 0.5)),
            "ssm_D": _w((lambda *s: torch.randn(*s, dtype=torch.bfloat16) * 0.4)(D)),
        }
    _A_in = _A_setup()

    def _B_setup():
        B, S, D, F = 1, 2048, 512, 1376
        return {
            "x":  _w((lambda *s: torch.randn(*s, dtype=torch.bfloat16) * 0.05)(B, S, D)),
            "w1": _w((lambda *s: torch.randn(*s, dtype=torch.bfloat16) * 3.2)(D, D) * (D ** -0.5)),
            "w2": _w((lambda *s: torch.randn(*s, dtype=torch.bfloat16) * 3.2)(D, D) * (D ** -0.5)),
            "w3": _w((lambda *s: torch.randn(*s, dtype=torch.bfloat16) * 3.2)(D, F) * (D ** -0.5)),
            "w4": _w((lambda *s: torch.randn(*s, dtype=torch.bfloat16) * 1.6)(F, D) * (F ** -0.5)),
        }
    _B_in = _B_setup()

    return {
        "A_q": _A_in["q"],
        "A_k": _A_in["k"],
        "A_v": _A_in["v"],
        "A_shift_k": _A_in["shift_k"],
        "A_ssm_k": _A_in["ssm_k"],
        "A_ssm_D": _A_in["ssm_D"],
        "B_x": _B_in["x"],
        "B_w1": _B_in["w1"],
        "B_w2": _B_in["w2"],
        "B_w3": _B_in["w3"],
        "B_w4": _B_in["w4"],
    }

def reference(A_q, A_k, A_v, A_shift_k, A_ssm_k, A_ssm_D, B_x, B_w1, B_w2, B_w3, B_w4):
    def _A_ref(q, k, v, shift_k, ssm_k, ssm_D):
        B, S, D = q.shape
        ks = shift_k.shape[-1]
        k_pad = _pad(k, ((0, 0), (ks - 1, 0), (0, 0)))
        k_shift = torch.zeros_like(k)
        for t in range(ks):
            k_shift = k_shift + k_pad[:, t:t + S, :] * shift_k[:, ks - 1 - t][None, None, :]
        kv = k_shift * v
        L = 2 * S
        kv_pad = _pad(kv, ((0, 0), (0, S), (0, 0)))
        kf_pad = _pad(ssm_k, ((0, 0), (0, S)))
        kv_f = (lambda x, axes=(-2,-1): torch.fft.rfft2(x.float(), dim=axes))(kv_pad[:, None, :, :], axes=(1, 2))
        kf_f = (lambda x, axes=(-2,-1): torch.fft.rfft2(x.float(), dim=axes))(kf_pad[:, None, :], axes=(1, 2))
        kf_f = (lambda x, *d: x.permute(*d))(kf_f, 1, 2, 0)
        y_f = kv_f * kf_f[None, :, :, :]
        y = (lambda x, s, axes=(-2,-1): torch.fft.irfft2(x, s=s, dim=axes).to(torch.bfloat16))(y_f, (1, L), axes=(1, 2))[:, 0, :S, :]
        y = y + kv * ssm_D[None, None, :]
        return q * y

    def _B_ref(x, w1, w2, w3, w4):
        B, S, D = x.shape
        h = _gelu(_layernorm(x, axis=-1) @ w1)
        c = D // 4
        g0 = _pad(h[:, :, 0*c:1*c], ((0, 0), (1, 0), (0, 0)))[:, :S, :]
        g1 = _pad(h[:, :, 1*c:2*c], ((0, 0), (0, 1), (0, 0)))[:, 1:, :]
        g2 = _pad(h[:, :, 2*c:3*c], ((0, 0), (2, 0), (0, 0)))[:, :S, :]
        g3 = _pad(h[:, :, 3*c:   ], ((0, 0), (0, 2), (0, 0)))[:, 2:, :]
        hs = torch.concatenate([g0, g1, g2, g3], axis=-1) @ w2
        x1 = x + hs
        h2 = _gelu(_layernorm(x1, axis=-1) @ w3) @ w4
        return x1 + h2

    x = A_q
    h = x + _A_ref(_layernorm(x, axis=-1), A_k, A_v, A_shift_k, A_ssm_k, A_ssm_D)
    h2 = h + _B_ref(_layernorm(h, axis=-1), B_w1, B_w2, B_w3, B_w4)
    return h2
```

```python
import re

REG_RE = re.compile(r'^(-?)(abs\()?([vas])(\d+)\)?$')
RNG_RE = re.compile(r'^(-?)([vas])\[(\d+):(\d+)\]$')

TRANS = ("v_exp_f32", "v_log_f32", "v_rcp_f32", "v_rsq_f32", "v_sqrt_f32", "v_sin_f32", "v_cos_f32")


def regs_of(op):
    op = op.strip()
    m = REG_RE.match(op)
    if m:
        return {m.group(3) + m.group(4)}
    m = RNG_RE.match(op)
    if m:
        return {m.group(2) + str(i) for i in range(int(m.group(3)), int(m.group(4)) + 1)}
    if op in ("vcc", "vcc_lo", "vcc_hi"):
        return {"vcc"}
    if op in ("exec", "exec_lo", "exec_hi"):
        return {"exec"}
    if op == "m0":
        return {"m0"}
    return set()


def split_ops(s):
    out, depth, cur = [], 0, ""
    for ch in s:
        if ch in "[(":
            depth += 1
        if ch in "])":
            depth -= 1
        if ch == "," and depth == 0:
            out.append(cur.strip())
            cur = ""
        else:
            cur += ch
    if cur.strip():
        out.append(cur.strip())
    return out


class Ins:
    __slots__ = ("text", "mn", "kind", "rd", "wr", "cond", "states", "passes", "A", "B", "C", "D",
                 "wide_data", "is_dpp", "is_trans", "is_perm", "is_rdlane", "lds_dma", "sgpr_rd", "label", "sdwa_dst")

    def __init__(self, text, cond):
        self.text = text
        self.cond = cond
        self.rd, self.wr = set(), set()
        self.states = 1
        self.passes = 0
        self.A = self.B = self.C = self.D = set()
        self.wide_data = set()
        self.is_dpp = self.is_trans = self.is_perm = self.is_rdlane = self.lds_dma = False
        self.sdwa_dst = False
        self.label = None
        t = text.split(";")[0].strip()
        if not t:
            self.kind, self.mn, self.states = "none", "", 0
            return
        if t.endswith(":") or t.startswith("."):
            self.kind, self.mn, self.states = "none", "", 0
            if t.endswith(":"):
                self.label = t[:-1]
            return
        parts = t.split(None, 1)
        mn = self.mn = parts[0]
        rest = parts[1] if len(parts) > 1 else ""
        ops = split_ops(rest)
        mods = ""
        if ops:
            last = ops[-1].split(None, 1)
            if len(last) > 1:
                ops[-1], mods = last[0], last[1]
        R = [regs_of(o) for o in ops]
        allr = set().union(*R) if R else set()
        if mn.startswith("v_mfma"):
            self.kind = "mfma"
            self.D, self.A, self.B, self.C = R[0], R[1], R[2], R[3]
            self.wr = set(R[0])
            self.rd = R[1] | R[2] | R[3]
            self.passes = 8 if "32x32" in mn else 4
        elif mn.startswith("v_"):
            self.kind = "valu"
            base = mn
            for sfx in ("_e32", "_e64", "_dpp", "_sdwa"):
                if base.endswith(sfx):
                    base = base[: -len(sfx)]
            self.is_dpp = mn.endswith("_dpp")
            self.is_trans = base in TRANS
            if mn.endswith("_sdwa") and "dst_sel:DWORD" not in mods:
                self.sdwa_dst = True
            if base == "v_nop":
                pass
            elif base.startswith("v_permlane") and "swap" in base:
                self.is_perm = True
                self.rd = set(allr)
                self.wr = set(allr)
            elif base.startswith("v_cmp"):
                assert not base.startswith("v_cmpx")
                self.wr = set(R[0])
                self.rd = set().union(*R[1:])
            elif base in ("v_add_co_u32", "v_sub_co_u32", "v_addc_co_u32", "v_subb_co_u32"):
                self.wr = R[0] | R[1]
                self.rd = set().union(*R[2:])
            else:
                self.wr = set(R[0])
                self.rd = set().union(*R[1:]) if len(R) > 1 else set()
                if base in ("v_fmac_f32", "v_dot2c_f32_bf16", "v_writelane_b32") or self.is_dpp or self.sdwa_dst:
                    self.rd |= R[0]
                if base in ("v_readlane_b32", "v_readfirstlane_b32"):
                    self.is_rdlane = True
        elif mn.startswith("ds_"):
            self.kind = "ds"
            if mn.startswith("ds_read") or mn.startswith("ds_bpermute") or mn.startswith("ds_permute") or mn.startswith("ds_swizzle"):
                self.wr = set(R[0])
                self.rd = set().union(*R[1:])
            else:
                self.rd = set(allr)
        elif mn.startswith("buffer_") or mn.startswith("global_"):
            self.kind = "vmem"
            is_lds = " lds" in (" " + mods) or "_lds_" in mn
            if mn in ("buffer_wbl2", "buffer_inv"):
                pass
            elif is_lds:
                self.lds_dma = True
                self.rd = set(allr) | {"m0"}
            elif "_load_" in mn:
                self.wr = set(R[0])
                self.rd = set().union(*R[1:])
            elif "_atomic_" in mn and "sc0" in mods:
                self.wr = set(R[0])
                self.rd = set(allr)
            else:
                self.rd = set(allr)
                if mn.endswith("x4") or mn.endswith("x3"):
                    self.wide_data = R[0] if mn.startswith("buffer_") else R[1]
        elif mn.startswith("s_load") or mn.startswith("s_buffer_load") or mn in ("s_memtime", "s_memrealtime"):
            self.kind = "smem"
            self.wr = set(R[0])
            self.rd = set().union(*R[1:]) if len(R) > 1 else set()
        elif mn == "s_nop":
            self.kind = "nop"
            self.states = int(ops[0]) + 1
        elif mn == "s_waitcnt":
            self.kind = "wait"
        elif mn.startswith("s_"):
            self.kind = "salu"
            if mn.startswith("s_cmp") or mn.startswith("s_bitcmp") or mn.startswith("s_cbranch") or mn in (
                    "s_branch", "s_barrier", "s_endpgm", "s_sleep", "s_setprio"):
                self.rd = set(allr)
                if "vcc" in mn:
                    self.rd |= {"vcc"}
            else:
                self.wr = set(R[0]) if R else set()
                self.rd = set().union(*R[1:]) if len(R) > 1 else set()
                if mn in ("s_addk_i32", "s_mulk_i32", "s_cmov_b32", "s_cmov_b64"):
                    self.rd |= R[0]
                if "saveexec" in mn:
                    self.wr |= {"exec"}
                    self.rd |= {"exec"}
        else:
            raise ValueError("unknown instruction: " + text)


def is_s(r):
    return r[0] == "s" or r == "vcc"


def need_states(p, c):
    n = 0
    if p.kind == "valu":
        vw = {r for r in p.wr if r[0] in "va" and r != "vcc"}
        sw = {r for r in p.wr if is_s(r)}
        if vw:
            if c.kind == "mfma" and vw & c.rd:
                n = max(n, 2)
            if c.kind == "valu" and vw & c.rd:
                if c.is_perm or c.is_dpp:
                    n = max(n, 2)
                if c.is_rdlane:
                    n = max(n, 1)
                if p.is_trans or p.sdwa_dst:
                    n = max(n, 1)
        if sw:
            if c.kind in ("valu", "mfma") and sw & c.rd:
                n = max(n, 4 if c.mn.startswith("v_readlane") or c.mn.startswith("v_writelane") else 2)
            if c.kind == "vmem" and sw & c.rd:
                n = max(n, 5)
            if c.kind in ("salu", "smem") and sw & c.rd:
                n = max(n, 1)
    elif p.kind == "mfma":
        big = {4: 8, 8: 12}[p.passes]
        ovl = {4: 6, 8: 10}[p.passes]
        war = {4: 3, 8: 7}[p.passes]
        if c.kind == "mfma":
            if p.D & (c.A | c.B):
                n = max(n, big)
            if p.D & c.C and not (p.D == c.C and p.passes == c.passes):
                n = max(n, ovl)
            if p.D & c.D and not (p.D == c.C and p.passes == c.passes):
                n = max(n, ovl)
        elif c.kind in ("valu", "vmem", "ds"):
            if p.D & (c.rd | c.wr):
                n = max(n, big)
            if p.C & c.wr:
                n = max(n, war)
    elif p.kind == "vmem" and p.wide_data:
        if c.kind in ("valu", "mfma") and p.wide_data & c.wr:
            n = max(n, 2)
        elif p.wide_data & c.wr:
            n = max(n, 1)
    elif p.kind == "salu":
        if "m0" in p.wr and c.lds_dma:
            n = max(n, 1)
    return n


class Asm:
    def __init__(self):
        self.ins = []
        self.vm = []
        self.lg = []
        self.cond = 0
        self.ncond = 0
        self.uid = 0
        self.track = True
        self.bg = []
        self.bg_every = 0
        self.bg_kinds = ("valu", "mfma")
        self._bgc = 0
        self._inbg = False
        self.nlabel = 0

    def _raw(self, text):
        i = Ins(text, self.cond)
        self.ins.append(i)
        return i

    def raw(self, text):
        for l in text.split("\n"):
            if l.strip():
                self._raw(l.strip())

    def _count_after(self, q, idx):
        return sum(1 for e in q[idx + 1:] if e["cond"] == 0 or (e["cond"] == self.cond))

    def _wait(self, vm=None, lg=None):
        parts = []
        if vm is not None:
            parts.append(f"vmcnt({min(vm, 63)})")
        if lg is not None:
            parts.append(f"lgkmcnt({min(lg, 15)})")
        if parts:
            self._raw("s_waitcnt " + " ".join(parts))

    def _retire(self, q, idx):
        if self.cond == 0:
            del q[: idx + 1]
        else:
            for e in q[: idx + 1]:
                e["done_in"] = self.cond

    def _pending(self, e):
        return e.get("done_in") != self.cond or self.cond == 0 and e.get("done_in") is not None

    def __call__(self, text):
        for l in text.split("\n"):
            l = l.strip()
            if l:
                self.one(l)

    def one(self, text):
        i = Ins(text, self.cond)
        touched = i.rd | i.wr
        vmw = lgw = None
        vi = li = None
        for k in range(len(self.vm) - 1, -1, -1):
            e = self.vm[k]
            if e["regs"] & touched and not (self.cond and e.get("done_in") == self.cond):
                vi = k
                break
        for k in range(len(self.lg) - 1, -1, -1):
            e = self.lg[k]
            if e["regs"] & touched and not (self.cond and e.get("done_in") == self.cond):
                li = k
                break
        if vi is not None:
            vmw = self._count_after(self.vm, vi)
            if vmw > 63:
                vmw = 63
            self._retire(self.vm, vi)
        if li is not None:
            if any(e["smem"] for e in self.lg):
                lgw = 0
                self._retire(self.lg, len(self.lg) - 1)
            else:
                lgw = self._count_after(self.lg, li)
                self._retire(self.lg, li)
        self._wait(vmw, lgw)
        self.ins.append(i)
        self.uid += 1
        if i.kind == "vmem":
            self.vm.append(dict(regs=set(i.wr), cond=self.cond, id=self.uid))
        elif i.kind == "ds":
            self.lg.append(dict(regs=set(i.wr), cond=self.cond, smem=False, id=self.uid))
        elif i.kind == "smem":
            self.lg.append(dict(regs=set(i.wr), cond=self.cond, smem=True, id=self.uid))
        if self.bg_every and self.bg and not self._inbg and i.kind in self.bg_kinds and self.cond == 0:
            self._bgc += 1
            if self._bgc >= self.bg_every:
                self._bgc = 0
                self.bg_pop()
        return i

    def bg_pop(self, n=1):
        self._inbg = True
        for _ in range(n):
            if self.bg:
                for x in self.bg.pop(0):
                    self.one(x)
        self._inbg = False

    def bg_start(self, groups, every, kinds=("valu", "mfma")):
        self.bg = self.bg + list(groups)
        self.bg_every = every
        self.bg_kinds = kinds
        self._bgc = 0

    def bg_stop(self, flush=True):
        self.bg_every = 0
        if flush:
            self.bg_pop(len(self.bg))

    def mark(self):
        return self.uid

    def wait_vm(self, tok=None):
        tok = self.uid if tok is None else tok
        idx = None
        for k, e in enumerate(self.vm):
            if e["id"] <= tok:
                idx = k
        if idx is None:
            return
        n = self._count_after(self.vm, idx)
        self._retire(self.vm, idx)
        self._wait(vm=n)

    def wait_lg(self, tok=None):
        tok = self.uid if tok is None else tok
        idx = None
        for k, e in enumerate(self.lg):
            if e["id"] <= tok:
                idx = k
        if idx is None:
            return
        if any(e["smem"] for e in self.lg):
            self._retire(self.lg, len(self.lg) - 1)
            self._wait(lg=0)
            return
        n = self._count_after(self.lg, idx)
        self._retire(self.lg, idx)
        self._wait(lg=n)

    def barrier(self, vm_tok=False, lg=True):
        if vm_tok is not False:
            self.wait_vm(vm_tok)
        if lg:
            self.wait_lg()
        self._raw("s_barrier")

    def label(self, base="L"):
        self.nlabel += 1
        return f"{base}_{self.nlabel}"

    def begin_cond(self):
        assert self.cond == 0
        self.ncond += 1
        self.cond = self.ncond

    def end_cond(self):
        self.cond = 0
        for q in (self.vm, self.lg):
            for e in q:
                e.pop("done_in", None)

    def either(self, branch_else, fa, fb):
        lb, le = self.label("ALT"), self.label("ALTE")
        self._raw(f"{branch_else} {lb}")
        import copy
        vm0, lg0, uid0 = copy.deepcopy(self.vm), copy.deepcopy(self.lg), self.uid
        n0 = len(self.ins)
        fa()
        self._raw(f"s_branch {le}")
        vm1, lg1, uid1 = self.vm, self.lg, self.uid
        self.vm, self.lg, self.uid = vm0, lg0, uid0
        self._raw(f"{lb}:")
        n1 = len(self.ins)
        fb()
        assert len(self.vm) == len(vm1) and len(self.lg) == len(lg1) and self.uid == uid1
        self._raw(f"{le}:")
        self.ncond += 1
        for i in self.ins[n0:n1]:
            i.cond = self.ncond
        self.ncond += 1
        for i in self.ins[n1:]:
            i.cond = self.ncond

    def text(self):
        out = []
        for c in self.ins:
            if c.kind not in ("none", "nop", "wait"):
                need = 0
                dist = 0
                for p in reversed(out):
                    if dist >= 20:
                        break
                    n = need_states(p, c)
                    if n > dist:
                        need = max(need, n - dist)
                    if p.cond == 0 or p.cond == c.cond:
                        dist += p.states
                while need > 0:
                    k = min(need, 16)
                    out.append(Ins(f"s_nop {k - 1}", c.cond))
                    need -= k
            out.append(c)
        self.final = out
        return "\n".join(("" if i.kind == "none" else "    ") + i.text for i in out)

    def stats(self):
        from collections import Counter
        return Counter(i.kind for i in self.final)


def interleave(main, fill, ratio=None):
    out = []
    n, m = len(main), len(fill)
    j = 0
    for k, x in enumerate(main):
        out.append(x)
        tgt = min(m, (m * (k + 1) + n - 1) // n) if ratio is None else min(m, int(ratio * (k + 1)))
        while j < tgt:
            out.append(fill[j])
            j += 1
    out.extend(fill[j:])
    return out


def v(i, n=1):
    return f"v{i}" if n == 1 else f"v[{i}:{i + n - 1}]"


def a(i, n=1):
    return f"a{i}" if n == 1 else f"a[{i}:{i + n - 1}]"


def s(i, n=1):
    return f"s{i}" if n == 1 else f"s[{i}:{i + n - 1}]"
```

```python
from asmgen import *

A_Q, A_K, A_V, A_SH, A_SSMK, A_SSMD, A_BX, A_W1, A_W2, A_W3, A_W4, A_OUT, A_DBG, A_WS = [8 * i for i in range(14)]
WS_KVT = 0x000000
WS_Y = 0x200000
WS_W1P = 0x400000
WS_W2P = 0x480000
WS_W3P = 0x500000
WS_W4P = 0x680000
WS_XC = 0x800000
XC_CL = 68 * 1024
WS_HH = 0xB00000
WS_X1 = 0xD00000
WS_G = 0xF00000
G_CL = 86 * 2048
WS_ST = 0x1480000
WS_ST2 = 0x1490000
WS_FLAG = 0x14E0000
WS_TRACE = 0x1800000
SRD3 = 0x20000


def srd(A, d, base, off, size):
    if off == 0:
        A(f"s_mov_b32 s{d}, s{base}")
        A(f"s_mov_b32 s{d + 1}, s{base + 1}")
    else:
        o = hex(off) if isinstance(off, int) else off
        A(f"s_add_u32 s{d}, s{base}, {o}")
        A(f"s_addc_u32 s{d + 1}, s{base + 1}, 0")
    A(f"s_mov_b32 s{d + 2}, {hex(size)}")
    A(f"s_mov_b32 s{d + 3}, {hex(SRD3)}")


def unpack(A, lo, hi, src):
    A(f"v_lshlrev_b32 v{lo}, 16, v{src}")
    A(f"v_and_b32 v{hi}, 0xffff0000, v{src}")


def gen_k1():
    A = Asm()
    A("s_cmp_ge_u32 s2, 256")
    A("s_cbranch_scc1 K1_END")
    A(f"s_load_dwordx4 s[4:7], s[0:1], {A_K}")
    A(f"s_load_dwordx2 s[24:25], s[0:1], {A_SH}")
    A(f"s_load_dwordx2 s[26:27], s[0:1], {A_WS}")
    A("s_and_b32 s28, s2, 7")
    A("s_lshr_b32 s29, s2, 3")
    A("v_and_b32 v1, 31, v0")
    A("v_lshrrev_b32 v2, 5, v0")
    A("s_lshl_b32 s30, s29, 6")
    A("v_lshl_add_u32 v3, v2, 3, s30")
    A("s_lshl_b32 s31, s28, 7")
    A("v_lshl_add_u32 v4, v1, 2, s31")
    A("v_lshl_add_u32 v5, v3, 10, v4")
    A("v_subrev_u32 v6, 0xc00, v5")
    A("v_cmp_eq_u32 vcc, 0, v3")
    A("v_mov_b32 v7, 0x80000000")
    A("v_cndmask_b32 v6, v6, v7, vcc")
    A("v_lshlrev_b32 v7, 2, v4")
    A("s_movk_i32 s33, 0x1000")
    srd(A, 8, 4, 0, 0x200000)
    srd(A, 12, 6, 0, 0x200000)
    srd(A, 16, 24, 0, 4096)
    K0, V0, S0 = 10, 22, 30
    for i in range(3):
        A(f"buffer_load_dword v{K0 + i}, v6, s[8:11], 0 offen offset:{1024 * i}")
    for i in range(8):
        A(f"buffer_load_dword v{K0 + 3 + i}, v5, s[8:11], {'0' if i < 4 else 's33'} offen offset:{1024 * (i % 4)}")
    A(f"buffer_load_dwordx4 v[{S0}:{S0 + 3}], v7, s[16:19], 0 offen")
    for i in range(8):
        A(f"buffer_load_dword v{V0 + i}, v5, s[12:15], {'0' if i < 4 else 's33'} offen offset:{1024 * (i % 4)}")
    srd(A, 20, 26, WS_KVT, 0x200000)
    srd(A, 36, 26, WS_FLAG, 32 * 1024)
    A("s_lshl_b32 s34, s2, 7")
    A("v_lshlrev_b32 v8, 2, v0")
    A("v_cmp_gt_u32 vcc, 32, v0")
    A("v_mov_b32 v9, 0x80000000")
    A("v_cndmask_b32 v8, v9, v8, vcc")
    A("v_mov_b32 v9, 0")
    A("buffer_store_dword v9, v8, s[36:39], s34 offen")
    A("v_lshlrev_b32 v8, 11, v4")
    A("v_sub_u32 v9, 2040, v3")
    A("v_lshl_add_u32 v8, v9, 1, v8")
    KF, VF, SF, O, P0, P1 = 34, 56, 72, 80, 96, 100
    for i in range(11):
        unpack(A, KF + 2 * i, KF + 2 * i + 1, K0 + i)
    for j in range(4):
        for c in range(2):
            src = S0 + 2 * c + (j >> 1)
            if j & 1:
                A(f"v_and_b32 v{SF + 2 * j + c}, 0xffff0000, v{src}")
            else:
                A(f"v_lshlrev_b32 v{SF + 2 * j + c}, 16, v{src}")
    for t in range(8):
        A(f"v_pk_mul_f32 {v(O + 2 * t, 2)}, {v(KF + 2 * t, 2)}, {v(SF + 6, 2)}")
    for j in (2, 1, 0):
        for t in range(8):
            A(f"v_pk_fma_f32 {v(O + 2 * t, 2)}, {v(KF + 2 * (t + 3 - j), 2)}, {v(SF + 2 * j, 2)}, {v(O + 2 * t, 2)}")
    for t in range(8):
        unpack(A, VF + 2 * t, VF + 2 * t + 1, V0 + t)
    for t in range(8):
        A(f"v_pk_mul_f32 {v(O + 2 * t, 2)}, {v(O + 2 * t, 2)}, {v(VF + 2 * t, 2)}")
    for i in range(4):
        A(f"v_cvt_pk_bf16_f32 v{P0 + i}, v{O + 2 * (7 - 2 * i)}, v{O + 2 * (6 - 2 * i)}")
    A(f"buffer_store_dwordx4 {v(P0, 4)}, v8, s[20:23], 0 offen")
    for i in range(4):
        A(f"v_cvt_pk_bf16_f32 v{P1 + i}, v{O + 2 * (7 - 2 * i) + 1}, v{O + 2 * (6 - 2 * i) + 1}")
    A(f"buffer_store_dwordx4 {v(P1, 4)}, v8, s[20:23], s33 offen")
    A("K1_END:")
    return A, 104, 104


K2_F = 0
F_COPY = 4224
F_CH = 2 * F_COPY
K2_U = 2 * F_CH
U_CH = 6144
K2_X = K2_U + 2 * U_CH
K2_LDS = K2_X + 32768


def gen_k2():
    A = Asm()
    A("s_cmp_ge_u32 s2, 256")
    A("s_cbranch_scc1 K2_RELAY")
    A(f"s_load_dwordx4 s[4:7], s[0:1], {A_SSMK}")
    A(f"s_load_dwordx2 s[26:27], s[0:1], {A_WS}")
    A("s_and_b32 s28, s2, 7")
    A("s_lshr_b32 s29, s2, 3")
    A("s_lshl_b32 s28, s28, 5")
    A("s_add_u32 s28, s28, s29")
    A("v_lshrrev_b32 v2, 6, v0")
    A("v_and_b32 v1, 63, v0")
    A("v_readfirstlane_b32 s30, v2")
    A("s_lshr_b32 s31, s30, 1")
    A("s_and_b32 s32, s30, 1")
    A("s_lshl_b32 s33, s28, 1")
    A("s_add_u32 s33, s33, s31")
    A("s_lshl_b32 s34, s33, 12")
    A("v_lshlrev_b32 v3, 4, v1")
    A("s_lshl_b32 s35, s32, 2")
    A("v_add_u32 v4, s35, v3")
    A("v_lshlrev_b32 v5, 5, v1")
    A("s_lshl_b32 s35, s32, 4")
    A("v_add_u32 v5, s35, v5")
    srd(A, 8, 4, "s34", 4096)
    A(f"s_add_u32 s35, s34, {hex(WS_KVT)}")
    srd(A, 12, 26, "s35", 4096)
    A(f"s_mul_i32 s36, s31, {U_CH}")
    A("s_mul_i32 s37, s32, 3072")
    A("s_add_u32 s36, s36, s37")
    A(f"s_add_u32 s36, s36, {K2_U}")
    A("s_mov_b32 m0, s36")
    A("s_movk_i32 s38, 0x400")
    A("s_movk_i32 s39, 0x800")
    A("buffer_load_dwordx4 v5, s[12:15], 0 offen lds")
    A("buffer_load_dwordx4 v5, s[12:15], s38 offen offset:1024 lds")
    A("buffer_load_dwordx4 v5, s[12:15], s39 offen offset:2048 lds")
    A(f"s_mul_i32 s40, s31, {F_CH}")
    A(f"s_mul_i32 s37, s32, {F_COPY}")
    A("s_add_u32 s41, s40, s37")
    A(f"s_add_u32 s42, s41, {K2_F + 32}")
    A("s_mov_b32 m0, s42")
    for i in range(4):
        A(f"buffer_load_dwordx4 v4, s[8:11], 0 offen offset:{1024 * i} lds")
    A("v_mov_b32 v6, 0x80000000")
    A("v_cmp_eq_u32 vcc, 7, v1")
    A("s_cmp_eq_u32 s32, 1")
    A("s_cselect_b64 s[44:45], vcc, 0")
    A("v_cndmask_b32 v6, v6, 0, s[44:45]")
    A("buffer_load_dword v7, v6, s[8:11], 0 offen")
    A("s_lshl_b32 s35, s28, 2")
    A("s_load_dword s46, s[6:7], s35")
    A("v_min_u32 v6, 7, v1")
    A("v_lshlrev_b32 v6, 2, v6")
    A(f"s_add_u32 s42, s41, {K2_F}")
    A("v_add_u32 v6, s42, v6")
    A("v_and_b32 v8, 15, v1")
    A("v_lshrrev_b32 v9, 4, v1")
    A("v_add_u32 v10, 1, v8")
    A("v_and_b32 v11, 1, v10")
    A("v_lshlrev_b32 v11, 4, v11")
    A("v_bfe_u32 v12, v10, 1, 1")
    A(f"v_mul_u32_u24 v12, {F_COPY}, v12")
    A("v_and_b32 v10, 28, v10")
    A("v_lshl_add_u32 v12, v10, 1, v12")
    A("v_lshl_add_u32 v12, v9, 6, v12")
    A("s_lshl_b32 s35, s32, 8")
    A("s_add_u32 s35, s35, s40")
    A(f"s_add_u32 s35, s35, {K2_F}")
    A("v_add_u32 v12, s35, v12")
    A("v_lshlrev_b32 v13, 1, v9")
    A("v_sub_u32 v13, v13, v8")
    A(f"s_mul_i32 s36, s31, {U_CH}")
    A("s_lshl_b32 s35, s32, 7")
    A("s_add_u32 s36, s36, s35")
    A(f"s_add_u32 s36, s36, {K2_U + 240}")
    A("v_lshl_add_u32 v13, v13, 4, s36")
    A("s_mov_b64 exec, 0xff")
    A("ds_write_b32 v6, v7")
    A("s_mov_b64 exec, -1")
    A("s_lshl_b32 s35, s30, 13")
    A(f"s_add_u32 s35, s35, {K2_X}")
    A("v_add_u32 v14, s35, v3")
    A("s_lshl_b32 s35, s30, 11")
    A(f"s_add_u32 s35, s35, {K2_X}")
    A("v_add_u32 v15, s35, v3")
    A("v_lshrrev_b32 v16, 1, v9")
    A("v_mul_u32_u24 v16, 3072, v16")
    A("v_lshl_add_u32 v16, v8, 4, v16")
    A("v_and_b32 v17, 1, v9")
    A("v_lshl_add_u32 v16, v17, 3, v16")
    A("s_lshl_b32 s35, s30, 9")
    A(f"s_sub_u32 s35, {K2_U + 3072 + 16 * 111 + 8}, s35")
    A("v_sub_u32 v16, s35, v16")
    A("v_lshlrev_b32 v17, 6, v8")
    A("v_lshl_add_u32 v17, v9, 4, v17")
    A("s_lshl_b32 s35, s30, 11")
    A("v_add_u32 v17, s35, v17")
    A("s_lshl_b32 s47, s28, 13")
    srd(A, 16, 26, WS_Y, 0x200000)
    A.wait_vm()
    A.barrier()
    ACC, BB, AR, TL = 20, 52, 116, 244
    def areg(i, d):
        return AR + 16 * i + d if d < 16 else TL + i
    def a_reads(f):
        out = []
        for i in range(8):
            pairs = {0: (0, 1, 2), 1: (3, 4), 2: (5, 6), 3: (7,)}[f]
            for pr in pairs:
                out.append(f"ds_read_b64 {v(AR + 16 * i + 2 * pr, 2)}, v12 offset:{512 * i + 8 * pr}")
            if f == 3:
                out.append(f"ds_read_b32 v{TL + i}, v12 offset:{512 * i + 64}")
        return out
    def a_align(f, i):
        return [f"v_alignbit_b32 v{areg(i, d)}, v{areg(i, d + 1)}, v{areg(i, d)}, v11" for d in range(4 * f, 4 * f + 4)]
    def b_reads(f):
        return [f"ds_read_b128 {v(BB + 32 * (f & 1) + 4 * e, 4)}, v13 offset:{(f & 1) * 3072 + 16 * (112 - 16 * e + (f >> 1))}"
                for e in range(8)]
    def mf(f, i, e):
        J = i + e
        c = "0" if (f == 0 and i == 0) else v(ACC + 4 * J, 4)
        return f"v_mfma_f32_16x16x32_bf16 {v(ACC + 4 * J, 4)}, {v(AR + 16 * i + 4 * f, 4)}, {v(BB + 32 * (f & 1) + 4 * e, 4)}, {c}"
    ar0 = a_reads(0)
    br0 = b_reads(0)
    A("\n".join(ar0[0:3] + br0 + ar0[3:]))
    A("\n".join(a_align(0, 0)))
    for f in range(4):
        nxt = []
        if f < 3:
            ar, br = a_reads(f + 1), b_reads(f + 1)
            nxt = interleave(ar, br)
        if f < 3:
            groups = []
            for i in range(8):
                groups.append([mf(f, i, e) for e in range(8 - i)])
            k = 0
            for i in range(8):
                fill = a_align(f, i + 1) if i < 7 else []
                nread = 0
                room = 2 * len(groups[i]) - len(fill)
                take = max(0, min(len(nxt) - k, room))
                if i >= 5:
                    take = len(nxt) - k
                fill = fill + nxt[k:k + take]
                k += take
                if i == 7:
                    fill = fill + a_align(f + 1, 0)
                A("\n".join(interleave(groups[i], fill)))
        else:
            for i in range(1, 8):
                pass
            seq = []
            done_align = {0}
            pend = []
            for J in range(8):
                fill = a_align(3, J + 1) if J < 7 else []
                fill = fill + pend
                pend = [f"ds_write_b128 v14, {v(ACC + 4 * J, 4)} offset:{1024 * J}"]
                g = [mf(3, i, J - i) for i in range(J + 1)]
                A("\n".join(interleave(g, fill)))
            A("\n".join(pend))
    KV = 52
    for c in range(2):
        for jj in range(2):
            A(f"ds_read_b64 {v(KV + 4 * c + 2 * jj, 2)}, v16 offset:{c * U_CH + 256 * (1 - jj)}")
    A.barrier()
    X = 64
    for jj in range(2):
        for src in range(4):
            A(f"ds_read_b128 {v(X + 16 * jj + 4 * src, 4)}, v15 offset:{8192 * src + 1024 * jj}")
    A("s_lshl_b32 s48, s46, 16")
    A("s_and_b32 s49, s46, 0xffff0000")
    T = 100
    for jj in range(2):
        for c in range(2):
            b = X + 16 * jj + 8 * c
            A(f"v_pk_add_f32 {v(b, 2)}, {v(b, 2)}, {v(b + 4, 2)}")
            A(f"v_pk_add_f32 {v(b + 2, 2)}, {v(b + 2, 2)}, {v(b + 6, 2)}")
            k0 = KV + 4 * c + 2 * jj
            A(f"v_and_b32 v{T}, 0xffff0000, v{k0 + 1}")
            A(f"v_lshlrev_b32 v{T + 1}, 16, v{k0 + 1}")
            A(f"v_and_b32 v{T + 2}, 0xffff0000, v{k0}")
            A(f"v_lshlrev_b32 v{T + 3}, 16, v{k0}")
            for r in range(4):
                A(f"v_fmac_f32 v{b + r}, s{48 + c}, v{T + r}")
        o = 104 + 4 * jj
        for r in range(4):
            A(f"v_cvt_pk_bf16_f32 v{o + r}, v{X + 16 * jj + r}, v{X + 16 * jj + 8 + r}")
        A(f"buffer_store_dwordx4 {v(o, 4)}, v17, s[16:19], s47 offen offset:{1024 * jj}")
    A("s_endpgm")
    A("K2_RELAY:")
    B = Asm()
    B("s_cmp_ge_u32 s2, 512")
    B("s_cbranch_scc1 K2_END")
    B(f"s_load_dwordx4 s[4:7], s[0:1], {A_W1}")
    B(f"s_load_dwordx4 s[20:23], s[0:1], {A_W3}")
    B(f"s_load_dwordx2 s[26:27], s[0:1], {A_WS}")
    B("v_lshrrev_b32 v2, 6, v0")
    B("v_and_b32 v1, 63, v0")
    B("v_readfirstlane_b32 s30, v2")
    B("s_sub_u32 s28, s2, 256")
    B("s_lshl_b32 s28, s28, 2")
    B("s_add_u32 s28, s28, s30")
    B("s_mov_b32 s60, 0x05040100")
    B("s_mov_b32 s61, 0x07060302")
    B.wait_lg()
    srd(B, 16, 26, WS_W1P, WS_XC - WS_W1P)
    B("s_mov_b32 s11, 0x20000")
    B("v_and_b32 v3, 31, v1")
    B("v_lshrrev_b32 v4, 5, v1")
    B("v_and_b32 v5, 15, v1")
    B("v_lshrrev_b32 v6, 4, v1")
    B("v_lshlrev_b32 v7, 1, v3")
    B("v_and_b32 v7, 31, v7")
    B("v_bfe_u32 v8, v7, 2, 2")
    B("v_lshlrev_b32 v8, 3, v8")
    B("v_bfe_u32 v9, v7, 4, 1")
    B("v_lshl_add_u32 v8, v9, 2, v8")
    B("v_and_b32 v9, 3, v7")
    B("v_add_u32 v8, v8, v9")
    B("v_lshl_add_u32 v8, v4, 5, v8")
    B("v_lshlrev_b32 v8, 4, v8")
    B("v_lshrrev_b32 v9, 4, v3")
    B("v_lshlrev_b32 v10, 1, v5")
    B("v_and_b32 v10, 15, v10")
    B("v_lshl_add_u32 v10, v6, 4, v10")
    B("v_lshlrev_b32 v10, 4, v10")
    B("v_lshrrev_b32 v11, 3, v5")
    for it in range(2):
        R = 20 + 24 * it
        L = f"K2R{it}"
        if it:
            B("s_add_u32 s28, s28, 1024")
            B("s_cmp_ge_u32 s28, 1888")
            B("s_cbranch_scc1 K2_END")
        if it == 0:
            B("s_cmp_ge_u32 s28, 512")
            B(f"s_cbranch_scc1 {L}_W4")
            B("s_cmp_ge_u32 s28, 256")
            B("s_cselect_b32 s8, s6, s4")
            B("s_cselect_b32 s9, s7, s5")
            B("s_cselect_b32 s41, 1, 0")
            B("s_mov_b32 s10, 0x80000")
            B("s_and_b32 s42, s28, 7")
            B("s_bfe_u32 s43, s28, 0x50003")
            B("s_lshr_b32 s44, s43, 1")
            B("s_lshl_b32 s44, s44, 5")
            B("s_and_b32 s45, s43, 1")
            B("s_lshl_b32 s45, s45, 3")
            B("s_add_u32 s44, s44, s45")
            B("s_lshl_b32 s45, s43, 4")
            B("s_cmp_eq_u32 s41, 1")
            B("s_cselect_b32 s44, s44, s45")
            B("s_add_u32 s45, s41, 3")
            B("v_lshlrev_b32 v12, s45, v4")
            B("v_add_u32 v12, s44, v12")
            B("v_lshlrev_b32 v12, 10, v12")
            B("s_lshl_b32 s45, s42, 7")
            B("v_lshl_add_u32 v13, v3, 2, s45")
            B("v_add_u32 v12, v12, v13")
            B("s_lshl_b32 s45, s42, 16")
            B("s_lshl_b32 s46, s43, 10")
            B("s_add_u32 s45, s45, s46")
            B("s_lshl_b32 s46, s41, 19")
            B("s_add_u32 s45, s45, s46")
            B("v_lshl_add_u32 v13, v9, 15, v8")
            B("v_add_u32 v13, s45, v13")
            B("s_movk_i32 s40, 0x400")
            B(f"s_branch {L}_GO")
        B(f"{L}_W4:")
        if it == 1:
            B("s_cmp_ge_u32 s28, 1200")
            B(f"s_cbranch_scc1 {L}_W3")
        B("s_sub_u32 s41, s28, 512")
        B("s_and_b32 s42, s41, 7")
        B("s_lshr_b32 s43, s41, 3")
        B("s_mov_b32 s8, s22")
        B("s_mov_b32 s9, s23")
        B(f"s_mov_b32 s10, {1376 * 1024}")
        B("s_lshl_b32 s44, s43, 4")
        B("v_lshl_add_u32 v12, v4, 3, s44")
        B("v_lshlrev_b32 v12, 10, v12")
        B("s_lshl_b32 s45, s42, 7")
        B("v_lshl_add_u32 v13, v3, 2, s45")
        B("v_add_u32 v12, v12, v13")
        B(f"s_mul_i32 s45, s42, {2 * 86 * 1024}")
        B("s_lshl_b32 s46, s43, 10")
        B("s_add_u32 s45, s45, s46")
        B(f"s_add_u32 s45, s45, {WS_W4P - WS_W1P}")
        B(f"v_mul_u32_u24 v13, {86 * 1024}, v9")
        B("v_add3_u32 v13, v13, v8, s45")
        B("s_movk_i32 s40, 0x400")
        if it == 1:
            B(f"s_branch {L}_GO")
            B(f"{L}_W3:")
            B("s_sub_u32 s41, s28, 1200")
            B("s_and_b32 s43, s41, 15")
            B("s_lshr_b32 s42, s41, 4")
            B("s_mov_b32 s8, s20")
            B("s_mov_b32 s9, s21")
            B(f"s_mov_b32 s10, {512 * 2752}")
            B("v_and_b32 v12, 1, v6")
            B("v_lshlrev_b32 v12, 4, v12")
            B("v_lshrrev_b32 v13, 1, v6")
            B("v_lshl_add_u32 v12, v13, 3, v12")
            B("s_lshl_b32 s44, s43, 5")
            B("v_add_u32 v12, s44, v12")
            B("v_mul_u32_u24 v12, 2752, v12")
            B("s_lshl_b32 s45, s42, 6")
            B("v_lshl_add_u32 v13, v5, 2, s45")
            B("v_add_u32 v12, v12, v13")
            B("s_lshl_b32 s45, s42, 15")
            B("s_lshl_b32 s46, s43, 10")
            B("s_add_u32 s45, s45, s46")
            B(f"s_add_u32 s45, s45, {WS_W3P - WS_W1P}")
            B("v_lshl_add_u32 v13, v11, 14, v10")
            B("v_add_u32 v13, s45, v13")
            B("s_movk_i32 s40, 2752")
        B(f"{L}_GO:")
        B("s_mov_b32 s47, 0")
        for i in range(8):
            B(f"buffer_load_dword v{R + i}, v12, s[8:11], s47 offen")
            if i < 7:
                B("s_add_u32 s47, s47, s40")
        for i in range(4):
            B(f"v_perm_b32 v{R + 8 + i}, v{R + 2 * i + 1}, v{R + 2 * i}, s60")
            B(f"v_perm_b32 v{R + 12 + i}, v{R + 2 * i + 1}, v{R + 2 * i}, s61")
        B(f"buffer_store_dwordx4 {v(R + 8, 4)}, v13, s[16:19], 0 offen")
        B(f"buffer_store_dwordx4 {v(R + 12, 4)}, v13, s[16:19], 0 offen offset:16")
    B("K2_END:")
    A.ins += B.ins
    return A, 256, 256
```

```python
import struct
from asmgen import *
from k12 import *

STG0, STG1 = 0, 65536
RED = 131072
ST3 = RED + 16384
K3_LDS = ST3 + 1024
YS = STG1

C1 = -2.0 * 0.7978845608028654 * 1.4426950408889634
C2 = C1 * 0.044715
HUGE = 0x40000000


def fbits(x):
    return hex(struct.unpack("<I", struct.pack("<f", x))[0])


sC, sJ, sW, sKH, sNH = 3, 4, 5, 6, 7
SX, SY, SWT, SXC, SHH, SX1, SG, SST, SO = 8, 12, 16, 20, 24, 28, 32, 36, 40
sMODE = 44
sGC = 46
sT = 48
sTILE = 60
sW3 = 63
sFLAG = 66
sSTAT = 68
sTR = 80

vL16 = 2
vPOLL = 3
vB0, vB1, vB0H, vB1H = 4, 5, 6, 7
vA0, vA1, vA2, vA3 = 8, 9, 10, 11
vRW, vRR = 12, 13
vT0, vT1, vT2, vT3 = 14, 15, 16, 17
vOUT = 18
vONE = 19
ACC = 20
BF = 68
RES = 100
TMP = 116
W4X = 148
W2R = 192


def srdn(i):
    return f"s[{i}:{i + 3}]"


def gen_k3(opts):
    A = Asm()
    trace = opts.get("trace")
    ntr = [0]

    def stamp(real=False):
        if trace:
            if ntr[0]:
                A(f"s_mov_b32 s{sTR + ntr[0] - 1}, s100")
            A("s_memrealtime s[100:101]" if real else "s_memtime s[100:101]")
            ntr[0] += 1

    def stores(fn):
        A(f"s_cmp_eq_u32 s{sMODE}, 1")
        A.either("s_cbranch_scc0", lambda: fn(""), lambda: fn(" sc1"))

    def signal(phase, tok=None):
        A.wait_vm(tok)
        A.barrier()
        l = A.label("SIG")
        A(f"s_cmp_lg_u32 s{sW}, 0")
        A.raw(f"s_cbranch_scc1 {l}")
        A.begin_cond()
        A(f"s_lshl_b32 s{sT}, s{sJ}, 2")
        A(f"s_add_u32 s{sT}, s{sT}, s{sFLAG}")
        A("s_mov_b64 exec, 1")
        l2, l3 = A.label("SIGS"), A.label("SIGE")
        A(f"s_cmp_eq_u32 s{sMODE}, 1")
        A.raw(f"s_cbranch_scc0 {l2}")
        A(f"buffer_store_dword v{vONE}, off, {srdn(SST)}, s{sT} offset:{128 * phase}")
        A.raw(f"s_branch {l3}")
        A.raw(f"{l2}:")
        A.raw(f"buffer_store_dword v{vONE}, off, {srdn(SST)}, s{sT} offset:{128 * phase} sc1")
        A.raw(f"{l3}:")
        A("s_mov_b64 exec, -1")
        A.end_cond()
        A.raw(f"{l}:")

    def poll(phase):
        l, le = A.label("POLL"), A.label("POLLE")
        A(f"s_mov_b32 s{sT}, 0")
        A.raw(f"{l}:")
        A.raw(f"buffer_load_dword v{vT0}, v{vPOLL}, {srdn(SST)}, s{sFLAG} offen offset:{128 * phase} sc1")
        A.raw(f"s_add_u32 s{sT}, s{sT}, 1")
        A.raw(f"s_cmp_gt_u32 s{sT}, 0x200000")
        A.raw(f"s_cbranch_scc1 {le}")
        A.raw("s_waitcnt vmcnt(0)")
        A.raw(f"v_cmp_eq_u32 vcc, 0, v{vT0}")
        A.raw(f"s_cbranch_vccnz {l}")
        A.raw(f"{le}:")
        A.raw("s_waitcnt vmcnt(0)")
        del A.vm[:]

    def gelu_pair(x, t, out):
        return [
            f"v_pk_mul_f32 {v(t, 2)}, {v(x, 2)}, {v(x, 2)}",
            f"v_pk_fma_f32 {v(t, 2)}, {v(t, 2)}, s[{sGC}:{sGC + 1}], s[{sGC}:{sGC + 1}] op_sel:[0,1,0] op_sel_hi:[1,1,0]",
            f"v_pk_mul_f32 {v(t, 2)}, {v(t, 2)}, {v(x, 2)}",
            f"v_exp_f32 v{t}, v{t}",
            f"v_exp_f32 v{t + 1}, v{t + 1}",
            f"v_pk_add_f32 {v(t, 2)}, {v(t, 2)}, 1.0 op_sel_hi:[1,0]",
            f"v_rcp_f32 v{t}, v{t}",
            f"v_rcp_f32 v{t + 1}, v{t + 1}",
            f"v_pk_mul_f32 {v(t, 2)}, {v(t, 2)}, {v(x, 2)}",
            f"v_cvt_pk_bf16_f32 v{out}, v{t}, v{t + 1}",
        ]

    def zipped(lists):
        out = []
        for k in range(max(len(x) for x in lists)):
            for x in lists:
                if k < len(x):
                    out.append(x[k])
        return out

    def wload(dst, vaddr, soff, k):
        out = []
        if k and k % 4 == 0:
            out.append(f"s_add_u32 s{soff}, s{soff}, 0x1000")
        out.append(f"buffer_load_dwordx4 {dst}, v{vaddr}, {srdn(SWT)}, s{soff} offen offset:{1024 * (k % 4)}")
        return out

    def w4reg(f):
        if f < 11:
            return v(W4X + 4 * f, 4)
        if f < 27:
            return a(4 * (f - 11), 4)
        return v(W2R + 4 * (f - 27), 4)

    A("s_cmp_ge_u32 s2, 256")
    A("s_cbranch_scc1 K3_END")
    if trace:
        stamp(True)
        stamp()
    A(f"s_load_dwordx2 s[{sT}:{sT + 1}], s[0:1], {A_Q}")
    A(f"s_load_dwordx2 s[{sT + 2}:{sT + 3}], s[0:1], {A_OUT}")
    A(f"s_load_dwordx2 s[{sT + 4}:{sT + 5}], s[0:1], {A_WS}")
    A("v_lshrrev_b32 v2, 6, v0")
    A("v_and_b32 v1, 63, v0")
    A(f"v_readfirstlane_b32 s{sW}, v2")
    A(f"s_and_b32 s{sC}, s2, 7")
    A(f"s_lshl_b32 s{sC}, s{sC}, 2")
    A(f"s_lshr_b32 s{sJ}, s2, 6")
    A(f"s_add_u32 s{sC}, s{sC}, s{sJ}")
    A(f"s_bfe_u32 s{sJ}, s2, 0x30003")
    A(f"s_lshr_b32 s{sKH}, s{sW}, 1")
    A(f"s_and_b32 s{sNH}, s{sW}, 1")
    A(f"v_lshlrev_b32 v{vL16}, 4, v1")
    A(f"s_getreg_b32 s{sMODE}, hwreg(HW_REG_XCC_ID, 0, 4)")
    A(f"s_lshl_b32 s58, s{sC}, 6")
    A(f"s_lshl_b32 s59, s{sJ}, 3")
    A("s_add_u32 s58, s58, s59")
    A(f"v_lshlrev_b32 v{vT0}, 15, v1")
    A(f"s_lshl_b32 s59, s{sW}, 13")
    A("s_lshl2_add_u32 s59, s58, s59")
    A(f"v_add_u32 v{vT0}, s59, v{vT0}")
    A(f"s_cmp_eq_u32 s{sJ}, 0")
    A(f"s_cselect_b32 s57, -16, {hex(HUGE)}")
    A(f"s_cmp_eq_u32 s{sJ}, 7")
    A("s_cselect_b32 s57, 32, s57")
    A(f"v_add_u32 v{vT1}, s57, v{vT0}")
    A(f"s_lshl1_add_u32 s59, s{sW}, s58")
    A("s_lshl_b32 s59, s59, 10")
    A(f"v_add_u32 v{vT2}, s59, v{vL16}")
    A(f"s_cmp_eq_u32 s{sJ}, 0")
    A("s_cselect_b32 s56, -2, 64")
    A(f"s_add_u32 s56, s56, s{sW}")
    A(f"s_cmp_lt_u32 s{sW}, 2")
    A(f"s_cselect_b32 s55, s57, {hex(HUGE)}")
    A(f"s_lshl_b32 s54, s{sC}, 6")
    A("s_add_u32 s54, s54, s56")
    A("s_lshl_b32 s54, s54, 10")
    A(f"s_cmp_eq_u32 s55, {hex(HUGE)}")
    A(f"s_cselect_b32 s54, {hex(HUGE)}, s54")
    A(f"v_add_u32 v{vT3}, s54, v{vL16}")
    A("s_add_u32 s45, s56, 2")
    A("s_lshl_b32 s45, s45, 10")
    A(f"s_cmp_eq_u32 s55, {hex(HUGE)}")
    A(f"s_cselect_b32 s45, {hex(HUGE)}, s45")
    srd(A, SX, sT, 0, 0x200000)
    XR = 20
    A(f"buffer_load_dwordx4 {v(XR, 4)}, v{vT2}, {srdn(SX)}, 0 offen")
    A(f"buffer_load_dwordx4 {v(XR + 4, 4)}, v{vT2}, {srdn(SX)}, 0 offen offset:1024")
    A(f"buffer_load_dwordx4 {v(XR + 8, 4)}, v{vT3}, {srdn(SX)}, 0 offen")
    srd(A, SY, sT + 4, WS_Y, 0x200000)
    A(f"s_lshl_b32 s59, s{sW}, 10")
    A(f"s_add_u32 s59, s59, {YS}")
    A("s_mov_b32 m0, s59")
    A(f"buffer_load_dwordx4 v{vT0}, {srdn(SY)}, 0 offen lds")
    A("s_add_u32 s59, s59, 4096-16")
    A("s_mov_b32 m0, s59")
    A(f"buffer_load_dwordx4 v{vT0}, {srdn(SY)}, 0 offen offset:16 lds")
    A("s_add_u32 s59, s59, 4096+16")
    A("s_mov_b32 m0, s59")
    A(f"buffer_load_dwordx4 v{vT1}, {srdn(SY)}, 0 offen lds")
    tok_y = A.mark()
    srd(A, SST, sT + 4, WS_ST, WS_FLAG + 32768 - WS_ST)
    A(f"s_lshl_b32 s{sFLAG}, s{sC}, 10")
    A(f"s_add_u32 s{sFLAG}, s{sFLAG}, {hex(WS_FLAG - WS_ST)}")
    l = A.label("IDS")
    A(f"s_add_u32 s{sMODE}, s{sMODE}, 1")
    A(f"s_cmp_lg_u32 s{sW}, 0")
    A.raw(f"s_cbranch_scc1 {l}")
    A.begin_cond()
    A(f"s_lshl2_add_u32 s59, s{sJ}, s{sFLAG}")
    A(f"v_mov_b32 v{vPOLL}, s{sMODE}")
    A("s_mov_b64 exec, 1")
    A(f"buffer_store_dword v{vPOLL}, off, {srdn(SST)}, s59 offset:512 sc1")
    A("s_mov_b64 exec, -1")
    A.end_cond()
    A.raw(f"{l}:")
    srd(A, SWT, sT + 4, WS_W1P, WS_XC - WS_W1P)
    A(f"s_lshl1_add_u32 s59, s{sJ}, s{sNH}")
    A("s_lshl_b32 s58, s59, 15")
    A(f"s_lshl_b32 s57, s{sKH}, 14")
    A("s_add_u32 s58, s58, s57")
    A(f"s_mov_b32 s74, s58")
    A(f"s_add_u32 s75, s58, {hex(WS_W2P - WS_W1P)}")
    w12q = [wload(a(4 * k, 4), vL16, 74, k) for k in range(16)] + [wload(v(W2R + 4 * k, 4), vL16, 75, k) for k in range(16)]
    A(f"s_mul_i32 s67, s59, {86 * 1024}")
    A(f"s_mul_i32 s56, s{sKH}, {43 * 1024}")
    A("s_add_u32 s67, s67, s56")
    A(f"s_add_u32 s67, s67, {hex(WS_W4P - WS_W1P)}")
    A(f"s_mul_i32 s59, s{sC}, {XC_CL}")
    A(f"s_add_u32 s59, s59, {hex(WS_XC)}")
    srd(A, SXC, sT + 4, "s59", XC_CL)
    A(f"s_lshl_b32 s58, s{sC}, 16")
    A(f"s_add_u32 s59, s58, {hex(WS_HH)}")
    srd(A, SHH, sT + 4, "s59", 65536)
    A(f"s_add_u32 s59, s58, {hex(WS_X1)}")
    srd(A, SX1, sT + 4, "s59", 65536)
    A(f"s_mul_i32 s59, s{sC}, {G_CL}")
    A(f"s_add_u32 s59, s59, {hex(WS_G)}")
    srd(A, SG, sT + 4, "s59", G_CL)
    srd(A, SO, sT + 2, "s58", 65536)
    if trace:
        A(f"s_mov_b64 s[0:1], s[{sT + 4}:{sT + 5}]")
    A(f"s_mov_b32 s{sGC}, {fbits(C1)}")
    A(f"s_mov_b32 s{sGC + 1}, {fbits(C2)}")
    A(f"s_lshl_b32 s59, s{sW}, 3")
    A(f"s_add_u32 s59, s59, s{sJ}")
    for t in range(3):
        A(f"s_add_u32 s58, s59, {32 * t}")
        A(f"s_lshl_b32 s{sTILE + t}, s58, 11")
        A(f"s_lshl_b32 s{sW3 + t}, s58, 14")
        A(f"s_add_u32 s{sW3 + t}, s{sW3 + t}, {hex(WS_W3P - WS_W1P)}")
    A("s_cmp_lt_u32 s58, 86")
    A(f"s_cselect_b32 s{sTILE + 2}, s{sTILE + 2}, {hex(HUGE)}")
    A(f"s_cselect_b32 s{sW3 + 2}, s{sW3 + 2}, {hex(HUGE)}")
    A(f"v_min_u32 v{vPOLL}, 7, v1")
    A(f"v_lshlrev_b32 v{vPOLL}, 2, v{vPOLL}")
    A(f"v_mov_b32 v{vONE}, 1")
    A(f"s_lshl_b32 s59, s{sKH}, 12")
    A(f"s_lshl3_add_u32 s59, s{sNH}, s59")
    A(f"s_add_u32 s59, s59, {YS}")
    A(f"v_add_u32 v{vT0}, s59, v{vL16}")
    A(f"s_cmp_eq_u32 s{sJ}, 0")
    A("s_cselect_b32 s59, 2, 0")
    A(f"s_add_u32 s59, s59, s{sNH}")
    A(f"s_lshl_b32 s59, s59, 2")
    A(f"s_add_u32 s59, s59, {YS + 8192}")
    A(f"v_add_u32 v{vT1}, s59, v{vL16}")

    XF, QF, YR, YF, S1, S2, TT = 32, 56, 80, 92, 116, 120, 124

    def rowstats(src):
        for r in range(3):
            b = src + 8 * r
            t = TT + 4 * r
            A(f"v_pk_add_f32 {v(t, 2)}, {v(b, 2)}, {v(b + 2, 2)}")
            A(f"v_pk_mul_f32 {v(t + 2, 2)}, {v(b, 2)}, {v(b, 2)}")
        for k in (4, 6):
            for r in range(3):
                b = src + 8 * r
                t = TT + 4 * r
                A(f"v_pk_add_f32 {v(t, 2)}, {v(t, 2)}, {v(b + k, 2)}")
        for k in (2, 4, 6):
            for r in range(3):
                b = src + 8 * r
                t = TT + 4 * r
                A(f"v_pk_fma_f32 {v(t + 2, 2)}, {v(b + k, 2)}, {v(b + k, 2)}, {v(t + 2, 2)}")
        for r in range(3):
            A(f"v_add_f32 v{S1 + r}, v{TT + 4 * r}, v{TT + 4 * r + 1}")
            A(f"v_add_f32 v{S2 + r}, v{TT + 4 * r + 2}, v{TT + 4 * r + 3}")
        A(f"v_mov_b32 v{S1 + 3}, 0")
        A(f"v_mov_b32 v{S2 + 3}, 0")
        for S in (S1, S2):
            A(f"v_permlane32_swap_b32 v{S}, v{S + 2}")
            A(f"v_permlane32_swap_b32 v{S + 1}, v{S + 3}")
        for S in (S1, S2):
            A(f"v_add_f32 v{S}, v{S}, v{S + 2}")
            A(f"v_add_f32 v{S + 1}, v{S + 1}, v{S + 3}")
        for S in (S1, S2):
            A(f"v_permlane16_swap_b32 v{S}, v{S + 1}")
        for S in (S1, S2):
            A(f"v_add_f32 v{S}, v{S}, v{S + 1}")
        for sh in (8, 4, 2, 1):
            for S in (S1, S2):
                A(f"v_add_f32_dpp v{S}, v{S}, v{S} row_ror:{sh} row_mask:0xf bank_mask:0xf")
        A(f"v_mul_f32 v{S1}, {fbits(1.0 / 512)}, v{S1}")
        A(f"v_mul_f32 v{S1 + 1}, v{S1}, v{S1}")
        A(f"v_fma_f32 v{S2}, v{S2}, s{sT + 6}, -v{S1 + 1}")
        A(f"v_max_f32 v{S2}, 0, v{S2}")

    A(f"s_mov_b32 s{sT + 6}, {fbits(1.0 / 512)}")
    A.bg_start(w12q, opts.get("e12", 6))
    for r in range(3):
        for i in range(4):
            unpack(A, XF + 8 * r + 2 * i, XF + 8 * r + 2 * i + 1, XR + 4 * r + i)
    rowstats(XF)
    A(f"v_add_f32 v{S2}, {fbits(1e-5)}, v{S2}")
    A(f"v_rsq_f32 v{S2}, v{S2}")
    A(f"v_mul_f32 v{S1}, v{S1}, v{S2}")
    for r in range(3):
        A(f"v_readlane_b32 s{sSTAT + 2 * r}, v{S2}, {16 * r}")
        A(f"v_readlane_b32 s{sSTAT + 2 * r + 1}, v{S1}, {16 * r}")
    A.barrier(vm_tok=tok_y)
    stamp()
    for i in range(4):
        A(f"ds_read_b64 {v(YR + 2 * i, 2)}, v{vT0} offset:{1024 * i}")
    for i in range(4):
        A(f"ds_read_b32 v{YR + 8 + i}, v{vT1} offset:{1024 * i}")
    for r in range(3):
        sp = f"s[{sSTAT + 2 * r}:{sSTAT + 2 * r + 1}]"
        for i in range(4):
            A(f"v_pk_fma_f32 {v(QF + 8 * r + 2 * i, 2)}, {v(XF + 8 * r + 2 * i, 2)}, {sp}, {sp} op_sel:[0,0,1] op_sel_hi:[1,0,1] neg_lo:[0,0,1] neg_hi:[0,0,1]")
    for r in range(3):
        for i in range(4):
            unpack(A, YF + 8 * r + 2 * i, YF + 8 * r + 2 * i + 1, YR + 2 * i + r if r < 2 else YR + 8 + i)
    for r in range(3):
        for i in range(4):
            o = 8 * r + 2 * i
            A(f"v_pk_fma_f32 {v(XF + o, 2)}, {v(QF + o, 2)}, {v(YF + o, 2)}, {v(XF + o, 2)}")
    rowstats(XF)
    Z = 136
    A(f"v_add_f32 v{Z + 4}, {fbits(1e-5)}, v{S2}")
    A(f"v_rsq_f32 v{Z + 5}, v{Z + 4}")
    A(f"v_mov_b32 v{Z}, v{S1}")
    A(f"v_mul_f32 v{Z + 1}, v{Z + 4}, v{Z + 5}")
    A(f"v_mul_f32 v{Z + 6}, v{Z + 5}, v{Z + 5}")
    A(f"v_fmaak_f32 v{Z + 6}, v{Z + 6}, v{S2}, {fbits(1e-5)}")
    A(f"v_rsq_f32 v{Z + 7}, v{Z + 6}")
    A(f"v_mov_b32 v{Z + 3}, 0")
    A(f"v_mul_f32 v{Z + 2}, v{Z + 6}, v{Z + 7}")
    A(f"v_mul_f32 v{Z + 5}, v{Z + 5}, v{Z + 7}")
    A(f"v_mul_f32 v{Z + 4}, v{Z + 5}, v{S1}")
    for r in range(3):
        A(f"v_readlane_b32 s{sSTAT + 2 * r}, v{Z + 5}, {16 * r}")
        A(f"v_readlane_b32 s{sSTAT + 2 * r + 1}, v{Z + 4}, {16 * r}")
    for r in range(3):
        sp = f"s[{sSTAT + 2 * r}:{sSTAT + 2 * r + 1}]"
        for i in range(4):
            A(f"v_pk_fma_f32 {v(QF + 8 * r + 2 * i, 2)}, {v(XF + 8 * r + 2 * i, 2)}, {sp}, {sp} op_sel:[0,0,1] op_sel_hi:[1,0,1] neg_lo:[0,0,1] neg_hi:[0,0,1]")
    for r in range(3):
        for i in range(4):
            A(f"v_cvt_pk_bf16_f32 v{XR + 4 * r + i}, v{QF + 8 * r + 2 * i}, v{QF + 8 * r + 2 * i + 1}")
    A.bg_stop()
    A(f"s_lshl_b32 s59, s{sJ}, 3")
    A(f"s_lshl1_add_u32 s59, s{sW}, s59")
    A("s_lshl_b32 s57, s59, 4")
    A(f"s_lshl_b32 s56, s{sC}, 10")
    A("s_add_u32 s57, s57, s56")
    A("s_add_u32 s59, s59, 2")
    A("s_lshl_b32 s59, s59, 10")
    A(f"v_and_b32 v{vT2}, 47, v1")
    A(f"v_cmp_eq_u32 vcc, 0, v{vT2}")
    A(f"v_mov_b32 v{vT3}, {hex(HUGE)}")
    A(f"v_cndmask_b32 v{vT2}, v{vT3}, v1, vcc")
    stamp()
    poll(4)
    A(f"v_cmp_ne_u32 vcc, s{sMODE}, v{vT0}")
    A("s_cmp_eq_u64 vcc, 0")
    A(f"s_cselect_b32 s{sMODE}, 1, 0")
    if opts.get("safe"):
        A(f"s_mov_b32 s{sMODE}, 0")

    def st25(p):
        A(f"buffer_store_dwordx4 {v(XR, 4)}, v{vL16}, {srdn(SXC)}, s59 offen{p}")
        A(f"buffer_store_dwordx4 {v(XR + 4, 4)}, v{vL16}, {srdn(SXC)}, s59 offen offset:1024{p}")
        A(f"buffer_store_dwordx4 {v(XR + 8, 4)}, v{vL16}, {srdn(SXC)}, s45 offen{p}")
        A(f"buffer_store_dwordx4 {v(Z, 4)}, v{vT2}, {srdn(SST)}, s57 offen{p}")
    stores(st25)
    tok = A.mark()
    A(f"s_lshr_b32 s59, s{sJ}, 1")
    A("s_lshl_b32 s59, s59, 2")
    A("s_lshr_b32 s59, 0x4031, s59")
    A("s_and_b32 s59, s59, 15")
    A(f"s_lshl_b32 s58, s{sNH}, 5")
    A("s_add_u32 s59, s59, s58")
    A("s_lshl_b32 s59, s59, 10")
    A(f"s_lshl_b32 s58, s{sKH}, 9")
    A("s_add_u32 s59, s59, s58")
    A(f"v_lshrrev_b32 v{vT0}, 3, v1")
    A(f"v_lshlrev_b32 v{vT0}, 10, v{vT0}")
    A(f"v_add_u32 v{vT0}, s59, v{vT0}")
    A(f"v_and_b32 v{vT1}, 7, v1")
    A(f"v_lshrrev_b32 v{vT2}, 4, v1")
    A(f"v_xor_b32 v{vT1}, v{vT1}, v{vT2}")
    A(f"v_lshl_add_u32 v{vB0H}, v{vT1}, 4, v{vT0}")
    A(f"v_xor_b32 v{vB1H}, 64, v{vB0H}")
    A(f"v_and_b32 v{vT0}, 31, v1")
    A(f"v_lshrrev_b32 v{vT1}, 5, v1")
    A(f"v_bfe_u32 v{vT2}, v1, 1, 3")
    A(f"v_xor_b32 v{vT1}, v{vT1}, v{vT2}")
    A(f"v_lshlrev_b32 v{vT1}, 4, v{vT1}")
    A(f"v_lshl_add_u32 v{vT1}, v{vT0}, 7, v{vT1}")
    A(f"s_mul_i32 s58, s{sKH}, {8192 + 4096}")
    A(f"v_add_u32 v{vA0}, s58, v{vT1}")
    for k in (1, 2, 3):
        A(f"v_xor_b32 v{vA0 + k}, {32 * k}, v{vA0}")
    A(f"s_lshl_b32 s58, s{sW}, 12")
    A(f"s_add_u32 s58, s58, {RED}")
    A(f"v_add_u32 v{vRW}, s58, v{vL16}")
    A(f"v_xor_b32 v{vRR}, 8192, v{vRW}")
    A(f"v_lshrrev_b32 v{vT1}, 5, v1")
    A(f"v_lshlrev_b32 v{vT1}, 5, v{vT1}")
    A(f"v_lshl_add_u32 v{vT1}, v{vT0}, 10, v{vT1}")
    A(f"s_lshl_b32 s58, s{sKH}, 15")
    A(f"s_lshl_b32 s57, s{sJ}, 7")
    A("s_add_u32 s58, s58, s57")
    A(f"s_lshl_b32 s57, s{sNH}, 6")
    A("s_add_u32 s58, s58, s57")
    A(f"v_add_u32 v{vOUT}, s58, v{vT1}")
    signal(0, tok)
    stamp()
    poll(0)
    stamp()

    toks = []
    A(f"s_lshl_b32 s58, s{sW}, 12")
    for i in range(4):
        A(f"s_add_u32 s57, s58, {STG0 + 16384 * i}")
        A("s_mov_b32 m0, s57")
        for n in range(4):
            A(f"s_movk_i32 s56, {7168 * n + 128 * i}")
            A(f"buffer_load_dwordx4 v{vB1H if n & 1 else vB0H}, {srdn(SXC)}, s56 offen offset:{1024 * n} sc1 lds")
        toks.append(A.mark())
    XT, STT = TMP, TMP + 8
    A(f"buffer_load_dwordx4 {v(XT, 4)}, v{vOUT}, {srdn(SXC)}, 0 offen offset:2048 sc1")
    A(f"buffer_load_dwordx4 {v(XT + 4, 4)}, v{vOUT}, {srdn(SXC)}, 0 offen offset:2064 sc1")
    A(f"v_and_b32 v{vT0}, 31, v1")
    A(f"v_lshlrev_b32 v{vT0}, 4, v{vT0}")
    A(f"s_lshl_b32 s57, s{sC}, 10")
    A(f"s_lshl_b32 s56, s{sKH}, 9")
    A("s_add_u32 s57, s57, s56")
    A(f"buffer_load_dwordx4 {v(STT, 4)}, v{vT0}, {srdn(SST)}, s57 offen sc1")
    w3q = []
    for t in range(3):
        for k in range(16):
            w3q.append(wload(a(64 + 64 * t + 4 * k, 4), vL16, sW3 + t, k))
    w4q = [wload(w4reg(f), vL16, 67, f) for f in range(43)]
    n3a = opts.get("w3a", 20)
    A.bg_start(w3q[:n3a], 1, ("mfma",))

    def gemm32(nsteps_chunks, wreg, rd0, rd1, chunk_tok, extra=None):
        step = 0
        for ci, ns in enumerate(nsteps_chunks):
            A.barrier(vm_tok=chunk_tok(ci))
            if extra:
                extra(ci)
            reads = []
            for sp in range(ns):
                b = BF + 8 * (sp & 3)
                reads.append([f"ds_read_b128 {v(b, 4)}, {rd0(ci, sp)}", f"ds_read_b128 {v(b + 4, 4)}, {rd1(ci, sp)}"])
            for x in reads:
                A("\n".join(x))
            for sp in range(ns):
                b = BF + 8 * (sp & 3)
                c0 = "0" if step == 0 else v(ACC, 16)
                c1 = "0" if step == 0 else v(ACC + 16, 16)
                A(f"v_mfma_f32_32x32x16_bf16 {v(ACC, 16)}, {wreg(step)}, {v(b, 4)}, {c0}")
                A(f"v_mfma_f32_32x32x16_bf16 {v(ACC + 16, 16)}, {wreg(step)}, {v(b + 4, 4)}, {c1}")
                step += 1

    def reduce_pair():
        for q in range(4):
            A(f"ds_write_b128 v{vRW}, {v(ACC + 16 + 4 * q, 4)} offset:{1024 * q}")
        A.barrier()
        for q in range(4):
            A(f"ds_read_b128 {v(ACC + 16 + 4 * q, 4)}, v{vRR} offset:{1024 * q}")
        for q in range(8):
            A(f"v_pk_add_f32 {v(ACC + 2 * q, 2)}, {v(ACC + 2 * q, 2)}, {v(ACC + 16 + 2 * q, 2)}")

    for k in range(4):
        A(f"v_xor_b32 v{vB0 + k if k < 2 else vT2 + k - 2}, 4096, v{vA0 + k}")
    sent = [vB0, vB1, vT2, vT3]
    gemm32([4, 4, 4, 4], lambda st: a(4 * st, 4),
           lambda ci, sp: f"v{vA0 + sp} offset:{16384 * ci}",
           lambda ci, sp: f"v{sent[sp]} offset:{16384 * ci}",
           lambda ci: toks[ci])
    A.bg_stop()
    stamp()
    reduce_pair()
    PK = BF + 16
    A("\n".join(zipped([gelu_pair(ACC + 2 * q, BF + 2 * q, PK + q) for q in range(8)])))
    A(f"s_lshl1_add_u32 s45, s{sJ}, s{sNH}")
    A("s_lshl_b32 s45, s45, 12")
    A(f"s_lshl_b32 s58, s{sKH}, 10")
    A("s_add_u32 s45, s45, s58")

    def st3(p):
        A(f"buffer_store_dwordx4 {v(PK, 4)}, v{vL16}, {srdn(SHH)}, s45 offen{p}")
        A(f"buffer_store_dwordx4 {v(PK + 4, 4)}, v{vL16}, {srdn(SHH)}, s45 offen offset:2048{p}")
    stores(st3)
    tok = A.mark()
    A(f"s_mul_i32 s58, s{sKH}, {32768 + 1024}")
    A(f"s_add_u32 s58, s58, {STG1}")
    A(f"v_add_u32 v{vB0}, s58, v{vL16}")
    A(f"v_xor_b32 v{vB1}, 1024, v{vB0}")
    signal(1, tok)
    stamp()
    poll(1)
    stamp()

    toks = []
    A(f"s_lshl_b32 s58, s{sKH}, 15")
    A(f"s_lshl_b32 s57, s{sNH}, 12")
    A("s_add_u32 s58, s58, s57")
    for i in range(4):
        A(f"s_add_u32 s57, s58, {STG1}")
        A("s_mov_b32 m0, s57")
        for n in range(4):
            A(f"buffer_load_dwordx4 v{vL16}, {srdn(SHH)}, s58 offen offset:{1024 * n} sc1 lds")
        if i < 3:
            A("s_add_u32 s58, s58, 8192")
        toks.append(A.mark())
    A.bg_start(w3q[n3a:], 1, ("mfma",))
    gemm32([4, 4, 4, 4], lambda st: v(W2R + 4 * st, 4),
           lambda ci, sp: f"v{vB0} offset:{2048 * (4 * ci + sp)}",
           lambda ci, sp: f"v{vB1} offset:{2048 * (4 * ci + sp)}",
           lambda ci: toks[ci])
    A.bg_stop()
    stamp()
    reduce_pair()
    XB = ACC + 16
    for q in range(8):
        unpack(A, XB + 2 * q, XB + 2 * q + 1, XT + q)
    for q in range(8):
        A(f"v_pk_mul_f32 {v(XB + 2 * q, 2)}, {v(XB + 2 * q, 2)}, {v(STT + 2, 2)} op_sel_hi:[1,0]")
    for q in range(8):
        A(f"v_pk_add_f32 {v(ACC + 2 * q, 2)}, {v(ACC + 2 * q, 2)}, {v(XB + 2 * q, 2)}")
    for q in range(8):
        A(f"v_cvt_pk_bf16_f32 v{PK + q}, v{ACC + 2 * q}, v{ACC + 2 * q + 1}")
    for q in range(8):
        unpack(A, ACC + 2 * q, ACC + 2 * q + 1, PK + q)
    A(f"v_pk_add_f32 {v(BF, 2)}, {v(ACC, 2)}, {v(ACC + 2, 2)}")
    A(f"v_pk_mul_f32 {v(BF + 2, 2)}, {v(ACC, 2)}, {v(ACC, 2)}")
    for q in range(1, 8):
        if q > 1:
            A(f"v_pk_add_f32 {v(BF, 2)}, {v(BF, 2)}, {v(ACC + 2 * q, 2)}")
        A(f"v_pk_fma_f32 {v(BF + 2, 2)}, {v(ACC + 2 * q, 2)}, {v(ACC + 2 * q, 2)}, {v(BF + 2, 2)}")
    A(f"v_add_f32 v{BF}, v{BF}, v{BF + 1}")
    A(f"v_add_f32 v{BF + 2}, v{BF + 2}, v{BF + 3}")
    A(f"v_lshlrev_b32 v{vT0}, 2, v1")
    A(f"v_permlane32_swap_b32 v{BF}, v{BF + 2}")
    A(f"v_add_f32 v{BF}, v{BF}, v{BF + 2}")
    A(f"s_lshr_b32 s57, s45, 3")
    A(f"s_lshl_b32 s56, s{sKH}, 7")
    A("s_add_u32 s57, s57, s56")
    A(f"s_lshl_b32 s56, s{sC}, 13")
    A(f"s_add_u32 s56, s56, {hex(WS_ST2 - WS_ST)}")
    A("s_add_u32 s57, s57, s56")

    def st4(p):
        A(f"buffer_store_dwordx4 {v(PK, 4)}, v{vL16}, {srdn(SX1)}, s45 offen{p}")
        A(f"buffer_store_dwordx4 {v(PK + 4, 4)}, v{vL16}, {srdn(SX1)}, s45 offen offset:2048{p}")
        A(f"buffer_store_dword v{BF}, v{vT0}, {srdn(SST)}, s57 offen{p}")
    stores(st4)
    tok = A.mark()
    for q in range(8):
        A(f"v_pk_fma_f32 {v(XB + 2 * q, 2)}, {v(XB + 2 * q, 2)}, {v(STT, 2)}, {v(STT, 2)} op_sel:[0,1,0] op_sel_hi:[1,1,0]")
    for q in range(8):
        A(f"v_pk_add_f32 {v(RES + 2 * q, 2)}, {v(ACC + 2 * q, 2)}, {v(XB + 2 * q, 2)}")
    A(f"v_and_b32 v{vT1}, 15, v1")
    A(f"v_lshrrev_b32 v{vT2}, 4, v1")
    A(f"v_lshrrev_b32 v{vT3}, 1, v{vT2}")
    A(f"v_lshlrev_b32 v{vA0}, 11, v{vT3}")
    A(f"v_lshlrev_b32 v{vA1}, 9, v{vT3}")
    A(f"v_and_b32 v{vT3}, 1, v{vT2}")
    A(f"v_lshl_add_u32 v{vA0}, v{vT3}, 9, v{vA0}")
    A(f"v_lshl_add_u32 v{vA0}, v{vT1}, 4, v{vA0}")
    A(f"v_lshl_add_u32 v{vA1}, v{vT3}, 3, v{vA1}")
    A(f"v_lshl_add_u32 v{vA1}, v{vT1}, 4, v{vA1}")
    A(f"v_lshlrev_b32 v{vA2}, 11, v{vT2}")
    A(f"v_lshl_add_u32 v{vA2}, v{vT1}, 2, v{vA2}")
    A(f"s_lshl_b32 s57, s{sKH}, 8")
    A(f"s_lshl_b32 s55, s{sNH}, 6")
    A("s_add_u32 s57, s57, s55")
    A("s_add_u32 s55, s57, s56")
    A(f"v_lshlrev_b32 v{vA3}, 3, v{vT1}")
    A(f"v_add_u32 v{vA3}, {ST3}, v{vA3}")
    signal(2, tok)
    stamp()
    CS = TMP
    ONES = BF + 4
    for k in range(4):
        A(f"v_mov_b32 v{ONES + k}, 0x3f803f80")
    for S in range(16):
        for t in range(3):
            c = "0" if S == 0 else v(CS + 4 * t, 4)
            A(f"v_mfma_f32_16x16x32_bf16 {v(CS + 4 * t, 4)}, {a(64 + 64 * t + 4 * S, 4)}, {v(ONES, 4)}, {c}")
    poll(2)
    stamp()

    toks = []
    A(f"s_lshl_b32 s58, s{sW}, 12")
    for i in range(4):
        A("s_mov_b32 m0, s58")
        for n in range(4):
            A(f"buffer_load_dwordx4 v{vL16}, {srdn(SX1)}, s58 offen offset:{1024 * n} sc1 lds")
        if i < 3:
            A("s_add_u32 s58, s58, 16384")
        toks.append(A.mark())
    SP = TMP + 12
    for z in range(4):
        for st in range(2):
            A(f"buffer_load_dword v{SP + 2 * z + st}, v{vA2}, {srdn(SST)}, s55 offen offset:{512 * z + 128 * st} sc1")
    A.bg_start(w4q, 4, ("mfma",))
    RS = TMP + 20

    def p5_stats():
        A(f"v_pk_add_f32 {v(SP, 2)}, {v(SP, 2)}, {v(SP + 2, 2)}")
        A(f"v_pk_add_f32 {v(SP + 4, 2)}, {v(SP + 4, 2)}, {v(SP + 6, 2)}")
        A(f"v_pk_add_f32 {v(SP, 2)}, {v(SP, 2)}, {v(SP + 4, 2)}")
        for swap in ("v_permlane16_swap_b32", "v_permlane32_swap_b32"):
            A(f"v_mov_b32 v{SP + 2}, v{SP}")
            A(f"v_mov_b32 v{SP + 3}, v{SP + 1}")
            A(f"{swap} v{SP}, v{SP + 2}")
            A(f"{swap} v{SP + 1}, v{SP + 3}")
            A(f"v_add_f32 v{SP}, v{SP}, v{SP + 2}")
            A(f"v_add_f32 v{SP + 1}, v{SP + 1}, v{SP + 3}")
        A(f"v_mul_f32 v{SP}, {fbits(1.0 / 512)}, v{SP}")
        A(f"v_mul_f32 v{SP + 2}, v{SP}, v{SP}")
        A(f"v_fma_f32 v{SP + 1}, v{SP + 1}, s{sT + 6}, -v{SP + 2}")
        A(f"v_max_f32 v{SP + 1}, 0, v{SP + 1}")
        A(f"v_add_f32 v{SP + 1}, {fbits(1e-5)}, v{SP + 1}")
        A(f"v_rsq_f32 v{SP + 2}, v{SP + 1}")
        A(f"s_lshl_b32 s57, s{sW}, 7")
        A(f"v_add_u32 v{SP + 4}, s57, v{vA3}")
        A(f"v_mul_f32 v{SP + 3}, v{SP + 2}, -v{SP}")
        A("s_mov_b64 exec, 0xffff")
        A(f"ds_write_b64 v{SP + 4}, {v(SP + 2, 2)}")
        A("s_mov_b64 exec, -1")

    for ci in range(4):
        if ci == 3:
            p5_stats()
        A.barrier(vm_tok=toks[ci])
        if ci == 3:
            for u in range(4):
                A(f"ds_read_b64 {v(RS + 2 * u, 2)}, v{vA3} offset:{128 * u}")

        def rd(S):
            return [f"ds_read_b128 {v(BF + 16 * (S & 1) + 4 * u, 4)}, v{vA0} offset:{4096 * S + 1024 * (u >> 1) + 256 * (u & 1)}" for u in range(4)]
        A("\n".join(rd(4 * ci)))
        for sp in range(4):
            S = 4 * ci + sp
            mf = []
            for u in range(4):
                for t in range(3):
                    d = v(ACC + 16 * t + 4 * u, 4)
                    mf.append(f"v_mfma_f32_16x16x32_bf16 {d}, {a(64 + 64 * t + 4 * S, 4)}, {v(BF + 16 * (S & 1) + 4 * u, 4)}, {'0' if S == 0 else d}")
            A("\n".join(interleave(mf, rd(S + 1) if sp < 3 else [], ratio=1)))
    A.bg_stop()
    stamp()
    for t in range(3):
        seqs = []
        for u in range(4):
            for hh in range(2):
                x = ACC + 16 * t + 4 * u + 2 * hh
                tq = BF + 4 * u + 2 * hh
                rs = v(RS + 2 * u, 2)
                seqs.append([
                    f"v_pk_mul_f32 {v(x, 2)}, {v(x, 2)}, {rs} op_sel_hi:[1,0]",
                    f"v_pk_fma_f32 {v(x, 2)}, {v(CS + 4 * t + 2 * hh, 2)}, {rs}, {v(x, 2)} op_sel:[0,1,0] op_sel_hi:[1,1,1]",
                ] + gelu_pair(x, tq, BF + 16 + 8 * (t & 1) + 2 * u + hh))
        A("\n".join(zipped(seqs)))

        def st5(p):
            for u in range(4):
                A(f"buffer_store_dwordx2 {v(BF + 16 + 8 * (t & 1) + 2 * u, 2)}, v{vA1}, {srdn(SG)}, s{sTILE + t} offen offset:{1024 * (u >> 1) + 256 * (u & 1)}{p}")
        stores(st5)
    tok = A.mark()
    A(f"s_mul_i32 s58, s{sKH}, {8192 + 1024}")
    A(f"v_add_u32 v{vB0}, s58, v{vL16}")
    A(f"v_xor_b32 v{vB1}, 1024, v{vB0}")
    A(f"v_add_u32 v{vB0H}, 0x10000, v{vB0}")
    A(f"v_add_u32 v{vB1H}, 0x10000, v{vB1}")
    signal(3, tok)
    stamp()
    poll(3)
    stamp()

    toks = []
    A(f"s_mul_i32 s58, s{sKH}, {43 * 2048}")
    A(f"s_lshl_b32 s57, s{sNH}, 12")
    A("s_add_u32 s58, s58, s57")
    A(f"s_lshl_b32 s55, s{sW}, 12")

    def gdma(i):
        A(f"s_add_u32 s57, s55, {16384 * (i % 8)}")
        A("s_mov_b32 m0, s57")
        for n in range(4):
            A(f"buffer_load_dwordx4 v{vL16}, {srdn(SG)}, s58 offen offset:{1024 * n} sc1 lds")
        A("s_add_u32 s58, s58, 8192")
        toks.append(A.mark())
    for i in range(8):
        gdma(i)

    def p6_extra(ci):
        if 1 <= ci <= 3:
            gdma(7 + ci)
    gemm32([4] * 10 + [3], w4reg,
           lambda ci, sp: f"v{vB0H if (ci % 8) >= 4 else vB0} offset:{16384 * (ci % 4) + 2048 * sp}",
           lambda ci, sp: f"v{vB1H if (ci % 8) >= 4 else vB1} offset:{16384 * (ci % 4) + 2048 * sp}",
           lambda ci: toks[ci], p6_extra)
    stamp()
    reduce_pair()
    for q in range(8):
        A(f"v_pk_add_f32 {v(ACC + 2 * q, 2)}, {v(ACC + 2 * q, 2)}, {v(RES + 2 * q, 2)}")
    for q in range(8):
        A(f"v_cvt_pk_bf16_f32 v{PK + q}, v{ACC + 2 * q}, v{ACC + 2 * q + 1}")
    A(f"buffer_store_dwordx4 {v(PK, 4)}, v{vOUT}, {srdn(SO)}, 0 offen")
    A(f"buffer_store_dwordx4 {v(PK + 4, 4)}, v{vOUT}, {srdn(SO)}, 0 offen offset:16")
    if trace:
        A.wait_vm()
        stamp()
        stamp(True)
        A(f"s_mov_b32 s{sTR + ntr[0] - 1}, s100")
        assert sTR + ntr[0] <= 100
        srd(A, SX, 0, WS_TRACE, 0x100000)
        A("s_lshl_b32 s58, s2, 2")
        A(f"s_add_u32 s58, s58, s{sW}")
        A("s_lshl_b32 s58, s58, 7")
        A("s_mov_b64 exec, 1")
        for k in range(ntr[0]):
            A(f"v_mov_b32 v{vT0}, s{sTR + k}")
            A(f"buffer_store_dword v{vT0}, off, {srdn(SX)}, s58 offset:{4 * k}")
        A(f"v_mov_b32 v{vT0}, s{sMODE}")
        A(f"buffer_store_dword v{vT0}, off, {srdn(SX)}, s58 offset:124")
    A("K3_END:")
    return A, 512, 256
```

```python
import sys, os
sys.path.insert(0, os.path.dirname(os.path.abspath(__file__)))
import k12
HDR = open("sequential_preLN__ssm_conv_h3__mixer_s_mlp__prompt.s.ref").read().split("; Override launch")[0]
KD = """.section .rodata,"a"
.p2align 6
.amdhsa_kernel {name}
  .amdhsa_next_free_vgpr {vgpr}
  .amdhsa_next_free_sgpr 102
  .amdhsa_accum_offset {acc}
  .amdhsa_group_segment_fixed_size 0
  .amdhsa_kernarg_size 112
  .amdhsa_user_sgpr_count 2
  .amdhsa_user_sgpr_kernarg_segment_ptr 1
  .amdhsa_system_sgpr_workgroup_id_x 1
  .amdhsa_float_denorm_mode_32 3
.end_amdhsa_kernel
"""
def kernel(name, A, vgpr, acc):
    t = A.text()
    print(name, dict(A.stats()), file=sys.stderr)
    return f".text\n.globl {name}\n.p2align 8\n.type {name},@function\n{name}:\n{t}\n    s_endpgm\n" + KD.format(name=name, vgpr=vgpr, acc=acc)

def module(parts, launches):
    hdr = HDR + "".join(f"; @launch kernel={n} grid=({g},1,1) block=({b},1,1) lds={l}\n" for n, g, b, l in launches)
    return hdr + '.amdgcn_target "amdgcn-amd-amdhsa--gfx950"\n' + "\n".join(parts)

def build(opts=None):
    opts = opts or {}
    parts = [kernel("k1_kernel", *k12.gen_k1()), kernel("k2_kernel", *k12.gen_k2())]
    launches = [("k1_kernel", 256, 256, 0), ("k2_kernel", 512, 256, k12.K2_LDS)]
    if not opts.get("no_k3"):
        import k3
        parts.append(kernel("k3_kernel", *k3.gen_k3(opts)))
        launches.append(("k3_kernel", 256, 256, k3.K3_LDS))
    return module(parts, launches)

if __name__ == "__main__":
    out = sys.argv[1]
    opts = {}
    for a in sys.argv[2:]:
        k, _, val = a.partition("=")
        opts[k] = int(val) if val else 1
    open(out, "w").write(build(opts))
```

```python
import sys, os
sys.path.insert(0, os.path.dirname(os.path.abspath(__file__)))
import k12
HDR = open("sequential_preLN__ssm_conv_h3__mixer_s_mlp__prompt.s.ref").read().split("; Override launch")[0]
KD = """.section .rodata,"a"
.p2align 6
.amdhsa_kernel {name}
  .amdhsa_next_free_vgpr {vgpr}
  .amdhsa_next_free_sgpr 102
  .amdhsa_accum_offset {acc}
  .amdhsa_group_segment_fixed_size 0
  .amdhsa_kernarg_size 112
  .amdhsa_user_sgpr_count 2
  .amdhsa_user_sgpr_kernarg_segment_ptr 1
  .amdhsa_system_sgpr_workgroup_id_x 1
  .amdhsa_float_denorm_mode_32 3
.end_amdhsa_kernel
"""
def kernel(name, A, vgpr, acc):
    t = A.text()
    print(name, dict(A.stats()), file=sys.stderr)
    return f".text\n.globl {name}\n.p2align 8\n.type {name},@function\n{name}:\n{t}\n    s_endpgm\n" + KD.format(name=name, vgpr=vgpr, acc=acc)

def module(parts, launches):
    hdr = HDR + "".join(f"; @launch kernel={n} grid=({g},1,1) block=({b},1,1) lds={l}\n" for n, g, b, l in launches)
    return hdr + '.amdgcn_target "amdgcn-amd-amdhsa--gfx950"\n' + "\n".join(parts)

def build(opts=None):
    opts = opts or {}
    parts = [kernel("k1_kernel", *k12.gen_k1()), kernel("k2_kernel", *k12.gen_k2())]
    launches = [("k1_kernel", 256, 256, 0), ("k2_kernel", 512, 256, k12.K2_LDS)]
    if not opts.get("no_k3"):
        import k3
        parts.append(kernel("k3_kernel", *k3.gen_k3(opts)))
        launches.append(("k3_kernel", 256, 256, k3.K3_LDS))
    if opts.get("pre") or opts.get("post"):
        from asmgen import Asm
        parts.append(kernel("e_kernel", Asm(), 8, 8))
        launches = [("e_kernel", 256, 256, 0)] * opts.get("pre", 0) + launches + [("e_kernel", 256, 256, 0)] * opts.get("post", 0)
    if opts.get("rep"):
        launches = launches * opts["rep"]
    return module(parts, launches)

if __name__ == "__main__":
    out = sys.argv[1]
    opts = {}
    for a in sys.argv[2:]:
        k, _, val = a.partition("=")
        opts[k] = int(val) if val else 1
    open(out, "w").write(build(opts))
```

```python
from asmgen import *

A_Q, A_K, A_V, A_SH, A_SSMK, A_SSMD, A_BX, A_W1, A_W2, A_W3, A_W4, A_OUT, A_DBG, A_WS = [8 * i for i in range(14)]
WS_KVT = 0x000000
WS_Y = 0x200000
WS_W1P = 0x400000
WS_W2P = 0x480000
WS_W3P = 0x500000
WS_W4P = 0x680000
WS_XC = 0x800000
XC_CL = 68 * 1024
WS_HH = 0xB00000
WS_X1 = 0xD00000
WS_G = 0xF00000
G_CL = 86 * 2048
WS_ST = 0x1480000
WS_ST2 = 0x1490000
WS_FLAG = 0x14E0000
WS_TRACE = 0x1800000
SRD3 = 0x20000


def srd(A, d, base, off, size):
    if off == 0:
        A(f"s_mov_b32 s{d}, s{base}")
        A(f"s_mov_b32 s{d + 1}, s{base + 1}")
    else:
        o = hex(off) if isinstance(off, int) else off
        A(f"s_add_u32 s{d}, s{base}, {o}")
        A(f"s_addc_u32 s{d + 1}, s{base + 1}, 0")
    A(f"s_mov_b32 s{d + 2}, {hex(size)}")
    A(f"s_mov_b32 s{d + 3}, {hex(SRD3)}")


def unpack(A, lo, hi, src):
    A(f"v_lshlrev_b32 v{lo}, 16, v{src}")
    A(f"v_and_b32 v{hi}, 0xffff0000, v{src}")


def trace_begin(A, opts):
    if opts.get("trace"):
        A("s_memrealtime s[90:91]")
        A("s_memtime s[92:93]")


def trace_mid(A, opts, k):
    if opts.get("trace"):
        A(f"s_memtime s[{80 + 2 * k}:{81 + 2 * k}]")


def trace_end(A, opts, kidx, wsreg, nmid=0):
    if opts.get("trace"):
        A.wait_vm()
        A("s_memtime s[94:95]")
        A("s_memrealtime s[96:97]")
        srd(A, 72, wsreg, WS_TRACE + 0x100000 * kidx, 0x100000)
        A("v_lshrrev_b32 v1, 6, v0")
        A("v_readfirstlane_b32 s70, v1")
        A("s_lshl2_add_u32 s70, s2, s70")
        A("s_lshl_b32 s70, s70, 7")
        A("s_mov_b64 exec, 1")
        regs = [90, 92] + [80 + 2 * k for k in range(nmid)] + [94, 96]
        for k, r in enumerate(regs):
            A(f"v_mov_b32 v1, s{r}")
            A(f"buffer_store_dword v1, off, s[72:75], s70 offset:{4 * k}")


def gen_k1(opts):
    A = Asm()
    A("s_cmp_ge_u32 s2, 256")
    A("s_cbranch_scc1 K1_END")
    trace_begin(A, opts)
    A(f"s_load_dwordx4 s[4:7], s[0:1], {A_K}")
    A(f"s_load_dwordx2 s[24:25], s[0:1], {A_SH}")
    A(f"s_load_dwordx2 s[26:27], s[0:1], {A_WS}")
    A("s_and_b32 s28, s2, 7")
    A("s_lshr_b32 s29, s2, 3")
    A("v_and_b32 v1, 31, v0")
    A("v_lshrrev_b32 v2, 5, v0")
    A("s_lshl_b32 s30, s29, 6")
    A("v_lshl_add_u32 v3, v2, 3, s30")
    A("s_lshl_b32 s31, s28, 7")
    A("v_lshl_add_u32 v4, v1, 2, s31")
    A("v_lshl_add_u32 v5, v3, 10, v4")
    A("v_subrev_u32 v6, 0xc00, v5")
    A("v_cmp_eq_u32 vcc, 0, v3")
    A("v_mov_b32 v7, 0x80000000")
    A("v_cndmask_b32 v6, v6, v7, vcc")
    A("v_lshlrev_b32 v7, 2, v4")
    A("s_movk_i32 s33, 0x1000")
    srd(A, 8, 4, 0, 0x200000)
    srd(A, 12, 6, 0, 0x200000)
    srd(A, 16, 24, 0, 4096)
    K0, V0, S0 = 10, 22, 30
    for i in range(3):
        A(f"buffer_load_dword v{K0 + i}, v6, s[8:11], 0 offen offset:{1024 * i}")
    for i in range(8):
        A(f"buffer_load_dword v{K0 + 3 + i}, v5, s[8:11], {'0' if i < 4 else 's33'} offen offset:{1024 * (i % 4)}")
    A(f"buffer_load_dwordx4 v[{S0}:{S0 + 3}], v7, s[16:19], 0 offen")
    for i in range(8):
        A(f"buffer_load_dword v{V0 + i}, v5, s[12:15], {'0' if i < 4 else 's33'} offen offset:{1024 * (i % 4)}")
    srd(A, 20, 26, WS_KVT, 0x200000)
    srd(A, 36, 26, WS_FLAG, 32 * 1024)
    A("s_lshl_b32 s34, s2, 7")
    A("v_lshlrev_b32 v8, 2, v0")
    A("v_cmp_gt_u32 vcc, 32, v0")
    A("v_mov_b32 v9, 0x80000000")
    A("v_cndmask_b32 v8, v9, v8, vcc")
    A("v_mov_b32 v9, 0")
    A("buffer_store_dword v9, v8, s[36:39], s34 offen")
    A("v_lshlrev_b32 v8, 11, v4")
    A("v_sub_u32 v9, 2040, v3")
    A("v_lshl_add_u32 v8, v9, 1, v8")
    KF, VF, SF, O, P0, P1 = 34, 56, 72, 80, 96, 100
    trace_mid(A, opts, 0)
    if opts.get("trace"):
        A.wait_vm()
    trace_mid(A, opts, 1)
    for i in range(11):
        unpack(A, KF + 2 * i, KF + 2 * i + 1, K0 + i)
    for j in range(4):
        for c in range(2):
            src = S0 + 2 * c + (j >> 1)
            if j & 1:
                A(f"v_and_b32 v{SF + 2 * j + c}, 0xffff0000, v{src}")
            else:
                A(f"v_lshlrev_b32 v{SF + 2 * j + c}, 16, v{src}")
    for t in range(8):
        A(f"v_pk_mul_f32 {v(O + 2 * t, 2)}, {v(KF + 2 * t, 2)}, {v(SF + 6, 2)}")
    for j in (2, 1, 0):
        for t in range(8):
            A(f"v_pk_fma_f32 {v(O + 2 * t, 2)}, {v(KF + 2 * (t + 3 - j), 2)}, {v(SF + 2 * j, 2)}, {v(O + 2 * t, 2)}")
    for t in range(8):
        unpack(A, VF + 2 * t, VF + 2 * t + 1, V0 + t)
    for t in range(8):
        A(f"v_pk_mul_f32 {v(O + 2 * t, 2)}, {v(O + 2 * t, 2)}, {v(VF + 2 * t, 2)}")
    for i in range(4):
        A(f"v_cvt_pk_bf16_f32 v{P0 + i}, v{O + 2 * (7 - 2 * i)}, v{O + 2 * (6 - 2 * i)}")
    A(f"buffer_store_dwordx4 {v(P0, 4)}, v8, s[20:23], 0 offen")
    for i in range(4):
        A(f"v_cvt_pk_bf16_f32 v{P1 + i}, v{O + 2 * (7 - 2 * i) + 1}, v{O + 2 * (6 - 2 * i) + 1}")
    A(f"buffer_store_dwordx4 {v(P1, 4)}, v8, s[20:23], s33 offen")
    trace_mid(A, opts, 2)
    trace_end(A, opts, 1, 26, 3)
    A("K1_END:")
    return A, 104, 104


K2_F = 0
F_COPY = 4224
F_CH = 2 * F_COPY
K2_U = 2 * F_CH
U_CH = 6144
K2_X = K2_U + 2 * U_CH
K2_LDS = K2_X + 32768


def gen_k2(opts):
    A = Asm()
    A("s_cmp_ge_u32 s2, 256")
    A("s_cbranch_scc1 K2_RELAY")
    trace_begin(A, opts)
    A(f"s_load_dwordx4 s[4:7], s[0:1], {A_SSMK}")
    A(f"s_load_dwordx2 s[26:27], s[0:1], {A_WS}")
    A("s_and_b32 s28, s2, 7")
    A("s_lshr_b32 s29, s2, 3")
    A("s_lshl_b32 s28, s28, 5")
    A("s_add_u32 s28, s28, s29")
    A("v_lshrrev_b32 v2, 6, v0")
    A("v_and_b32 v1, 63, v0")
    A("v_readfirstlane_b32 s30, v2")
    A("s_lshr_b32 s31, s30, 1")
    A("s_and_b32 s32, s30, 1")
    A("s_lshl_b32 s33, s28, 1")
    A("s_add_u32 s33, s33, s31")
    A("s_lshl_b32 s34, s33, 12")
    A("v_lshlrev_b32 v3, 4, v1")
    A("s_lshl_b32 s35, s32, 2")
    A("v_add_u32 v4, s35, v3")
    A("v_lshlrev_b32 v5, 5, v1")
    A("s_lshl_b32 s35, s32, 4")
    A("v_add_u32 v5, s35, v5")
    srd(A, 8, 4, "s34", 4096)
    A(f"s_add_u32 s35, s34, {hex(WS_KVT)}")
    srd(A, 12, 26, "s35", 4096)
    A(f"s_mul_i32 s36, s31, {U_CH}")
    A("s_mul_i32 s37, s32, 3072")
    A("s_add_u32 s36, s36, s37")
    A(f"s_add_u32 s36, s36, {K2_U}")
    A("s_mov_b32 m0, s36")
    A("s_movk_i32 s38, 0x400")
    A("s_movk_i32 s39, 0x800")
    A("buffer_load_dwordx4 v5, s[12:15], 0 offen lds")
    A("buffer_load_dwordx4 v5, s[12:15], s38 offen offset:1024 lds")
    A("buffer_load_dwordx4 v5, s[12:15], s39 offen offset:2048 lds")
    A(f"s_mul_i32 s40, s31, {F_CH}")
    A(f"s_mul_i32 s37, s32, {F_COPY}")
    A("s_add_u32 s41, s40, s37")
    A(f"s_add_u32 s42, s41, {K2_F + 32}")
    A("s_mov_b32 m0, s42")
    for i in range(4):
        A(f"buffer_load_dwordx4 v4, s[8:11], 0 offen offset:{1024 * i} lds")
    A("v_mov_b32 v6, 0x80000000")
    A("v_cmp_eq_u32 vcc, 7, v1")
    A("s_cmp_eq_u32 s32, 1")
    A("s_cselect_b64 s[44:45], vcc, 0")
    A("v_cndmask_b32 v6, v6, 0, s[44:45]")
    A("buffer_load_dword v7, v6, s[8:11], 0 offen")
    A("s_lshl_b32 s35, s28, 2")
    A("s_load_dword s46, s[6:7], s35")
    A("v_min_u32 v6, 7, v1")
    A("v_lshlrev_b32 v6, 2, v6")
    A(f"s_add_u32 s42, s41, {K2_F}")
    A("v_add_u32 v6, s42, v6")
    A("v_and_b32 v8, 15, v1")
    A("v_lshrrev_b32 v9, 4, v1")
    A("v_add_u32 v10, 1, v8")
    A("v_and_b32 v11, 1, v10")
    A("v_lshlrev_b32 v11, 4, v11")
    A("v_bfe_u32 v12, v10, 1, 1")
    A(f"v_mul_u32_u24 v12, {F_COPY}, v12")
    A("v_and_b32 v10, 28, v10")
    A("v_lshl_add_u32 v12, v10, 1, v12")
    A("v_lshl_add_u32 v12, v9, 6, v12")
    A("s_lshl_b32 s35, s32, 8")
    A("s_add_u32 s35, s35, s40")
    A(f"s_add_u32 s35, s35, {K2_F}")
    A("v_add_u32 v12, s35, v12")
    A("v_lshlrev_b32 v13, 1, v9")
    A("v_sub_u32 v13, v13, v8")
    A(f"s_mul_i32 s36, s31, {U_CH}")
    A("s_lshl_b32 s35, s32, 7")
    A("s_add_u32 s36, s36, s35")
    A(f"s_add_u32 s36, s36, {K2_U + 240}")
    A("v_lshl_add_u32 v13, v13, 4, s36")
    A("s_mov_b64 exec, 0xff")
    A("ds_write_b32 v6, v7")
    A("s_mov_b64 exec, -1")
    A("s_lshl_b32 s35, s30, 13")
    A(f"s_add_u32 s35, s35, {K2_X}")
    A("v_add_u32 v14, s35, v3")
    A("s_lshl_b32 s35, s30, 11")
    A(f"s_add_u32 s35, s35, {K2_X}")
    A("v_add_u32 v15, s35, v3")
    A("v_lshrrev_b32 v16, 1, v9")
    A("v_mul_u32_u24 v16, 3072, v16")
    A("v_lshl_add_u32 v16, v8, 4, v16")
    A("v_and_b32 v17, 1, v9")
    A("v_lshl_add_u32 v16, v17, 3, v16")
    A("s_lshl_b32 s35, s30, 9")
    A(f"s_sub_u32 s35, {K2_U + 3072 + 16 * 111 + 8}, s35")
    A("v_sub_u32 v16, s35, v16")
    A("v_lshlrev_b32 v17, 6, v8")
    A("v_lshl_add_u32 v17, v9, 4, v17")
    A("s_lshl_b32 s35, s30, 11")
    A("v_add_u32 v17, s35, v17")
    A("s_lshl_b32 s47, s28, 13")
    srd(A, 16, 26, WS_Y, 0x200000)
    trace_mid(A, opts, 0)
    A.wait_vm()
    A.barrier()
    trace_mid(A, opts, 1)
    ACC, BB, AR, TL = 20, 52, 116, 244
    def areg(i, d):
        return AR + 16 * i + d if d < 16 else TL + i
    def a_reads(f):
        out = []
        for i in range(8):
            pairs = {0: (0, 1, 2), 1: (3, 4), 2: (5, 6), 3: (7,)}[f]
            for pr in pairs:
                out.append(f"ds_read_b64 {v(AR + 16 * i + 2 * pr, 2)}, v12 offset:{512 * i + 8 * pr}")
            if f == 3:
                out.append(f"ds_read_b32 v{TL + i}, v12 offset:{512 * i + 64}")
        return out
    def a_align(f, i):
        return [f"v_alignbit_b32 v{areg(i, d)}, v{areg(i, d + 1)}, v{areg(i, d)}, v11" for d in range(4 * f, 4 * f + 4)]
    def b_reads(f):
        return [f"ds_read_b128 {v(BB + 32 * (f & 1) + 4 * e, 4)}, v13 offset:{(f & 1) * 3072 + 16 * (112 - 16 * e + (f >> 1))}"
                for e in range(8)]
    def mf(f, i, e):
        J = i + e
        c = "0" if (f == 0 and i == 0) else v(ACC + 4 * J, 4)
        return f"v_mfma_f32_16x16x32_bf16 {v(ACC + 4 * J, 4)}, {v(AR + 16 * i + 4 * f, 4)}, {v(BB + 32 * (f & 1) + 4 * e, 4)}, {c}"
    ar0 = a_reads(0)
    br0 = b_reads(0)
    A("\n".join(ar0[0:3] + br0 + ar0[3:]))
    A("\n".join(a_align(0, 0)))
    for f in range(4):
        nxt = []
        if f < 3:
            ar, br = a_reads(f + 1), b_reads(f + 1)
            nxt = interleave(ar, br)
        if f < 3:
            groups = []
            for i in range(8):
                groups.append([mf(f, i, e) for e in range(8 - i)])
            k = 0
            for i in range(8):
                fill = a_align(f, i + 1) if i < 7 else []
                nread = 0
                room = 2 * len(groups[i]) - len(fill)
                take = max(0, min(len(nxt) - k, room))
                if i >= 5:
                    take = len(nxt) - k
                fill = fill + nxt[k:k + take]
                k += take
                if i == 7:
                    fill = fill + a_align(f + 1, 0)
                A("\n".join(interleave(groups[i], fill)))
        else:
            for i in range(1, 8):
                pass
            seq = []
            done_align = {0}
            pend = []
            for J in range(8):
                fill = a_align(3, J + 1) if J < 7 else []
                fill = fill + pend
                pend = [f"ds_write_b128 v14, {v(ACC + 4 * J, 4)} offset:{1024 * J}"]
                g = [mf(3, i, J - i) for i in range(J + 1)]
                A("\n".join(interleave(g, fill)))
            A("\n".join(pend))
    trace_mid(A, opts, 2)
    KV = 52
    for c in range(2):
        for jj in range(2):
            A(f"ds_read_b64 {v(KV + 4 * c + 2 * jj, 2)}, v16 offset:{c * U_CH + 256 * (1 - jj)}")
    A.barrier()
    X = 64
    for jj in range(2):
        for src in range(4):
            A(f"ds_read_b128 {v(X + 16 * jj + 4 * src, 4)}, v15 offset:{8192 * src + 1024 * jj}")
    A("s_lshl_b32 s48, s46, 16")
    A("s_and_b32 s49, s46, 0xffff0000")
    T = 100
    for jj in range(2):
        for c in range(2):
            b = X + 16 * jj + 8 * c
            A(f"v_pk_add_f32 {v(b, 2)}, {v(b, 2)}, {v(b + 4, 2)}")
            A(f"v_pk_add_f32 {v(b + 2, 2)}, {v(b + 2, 2)}, {v(b + 6, 2)}")
            k0 = KV + 4 * c + 2 * jj
            A(f"v_and_b32 v{T}, 0xffff0000, v{k0 + 1}")
            A(f"v_lshlrev_b32 v{T + 1}, 16, v{k0 + 1}")
            A(f"v_and_b32 v{T + 2}, 0xffff0000, v{k0}")
            A(f"v_lshlrev_b32 v{T + 3}, 16, v{k0}")
            for r in range(4):
                A(f"v_fmac_f32 v{b + r}, s{48 + c}, v{T + r}")
        o = 104 + 4 * jj
        for r in range(4):
            A(f"v_cvt_pk_bf16_f32 v{o + r}, v{X + 16 * jj + r}, v{X + 16 * jj + 8 + r}")
        A(f"buffer_store_dwordx4 {v(o, 4)}, v17, s[16:19], s47 offen offset:{1024 * jj}")
    trace_mid(A, opts, 3)
    trace_end(A, opts, 2, 26, 4)
    A("s_endpgm")
    A("K2_RELAY:")
    B = Asm()
    B("s_cmp_ge_u32 s2, 512")
    B("s_cbranch_scc1 K2_END")
    trace_begin(B, opts)
    B(f"s_load_dwordx4 s[4:7], s[0:1], {A_W1}")
    B(f"s_load_dwordx4 s[20:23], s[0:1], {A_W3}")
    B(f"s_load_dwordx2 s[26:27], s[0:1], {A_WS}")
    B("v_lshrrev_b32 v2, 6, v0")
    B("v_and_b32 v1, 63, v0")
    B("v_readfirstlane_b32 s30, v2")
    B("s_sub_u32 s28, s2, 256")
    B("s_lshl_b32 s28, s28, 2")
    B("s_add_u32 s28, s28, s30")
    B("s_mov_b32 s60, 0x05040100")
    B("s_mov_b32 s61, 0x07060302")
    B.wait_lg()
    srd(B, 16, 26, WS_W1P, WS_XC - WS_W1P)
    B("s_mov_b32 s11, 0x20000")
    B("v_and_b32 v3, 31, v1")
    B("v_lshrrev_b32 v4, 5, v1")
    B("v_and_b32 v5, 15, v1")
    B("v_lshrrev_b32 v6, 4, v1")
    B("v_lshlrev_b32 v7, 1, v3")
    B("v_and_b32 v7, 31, v7")
    B("v_bfe_u32 v8, v7, 2, 2")
    B("v_lshlrev_b32 v8, 3, v8")
    B("v_bfe_u32 v9, v7, 4, 1")
    B("v_lshl_add_u32 v8, v9, 2, v8")
    B("v_and_b32 v9, 3, v7")
    B("v_add_u32 v8, v8, v9")
    B("v_lshl_add_u32 v8, v4, 5, v8")
    B("v_lshlrev_b32 v8, 4, v8")
    B("v_lshrrev_b32 v9, 4, v3")
    B("v_lshlrev_b32 v10, 1, v5")
    B("v_and_b32 v10, 15, v10")
    B("v_lshl_add_u32 v10, v6, 4, v10")
    B("v_lshlrev_b32 v10, 4, v10")
    B("v_lshrrev_b32 v11, 3, v5")
    for it in range(2):
        R = 20 + 24 * it
        L = f"K2R{it}"
        if it:
            B("s_add_u32 s28, s28, 1024")
            B("s_cmp_ge_u32 s28, 1888")
            B("s_cbranch_scc1 K2_FIN")
        if it == 0:
            B("s_cmp_ge_u32 s28, 512")
            B(f"s_cbranch_scc1 {L}_W4")
            B("s_cmp_ge_u32 s28, 256")
            B("s_cselect_b32 s8, s6, s4")
            B("s_cselect_b32 s9, s7, s5")
            B("s_cselect_b32 s41, 1, 0")
            B("s_mov_b32 s10, 0x80000")
            B("s_and_b32 s42, s28, 7")
            B("s_bfe_u32 s43, s28, 0x50003")
            B("s_lshr_b32 s44, s43, 1")
            B("s_lshl_b32 s44, s44, 5")
            B("s_and_b32 s45, s43, 1")
            B("s_lshl_b32 s45, s45, 3")
            B("s_add_u32 s44, s44, s45")
            B("s_lshl_b32 s45, s43, 4")
            B("s_cmp_eq_u32 s41, 1")
            B("s_cselect_b32 s44, s44, s45")
            B("s_add_u32 s45, s41, 3")
            B("v_lshlrev_b32 v12, s45, v4")
            B("v_add_u32 v12, s44, v12")
            B("v_lshlrev_b32 v12, 10, v12")
            B("s_lshl_b32 s45, s42, 7")
            B("v_lshl_add_u32 v13, v3, 2, s45")
            B("v_add_u32 v12, v12, v13")
            B("s_lshl_b32 s45, s42, 16")
            B("s_lshl_b32 s46, s43, 10")
            B("s_add_u32 s45, s45, s46")
            B("s_lshl_b32 s46, s41, 19")
            B("s_add_u32 s45, s45, s46")
            B("v_lshl_add_u32 v13, v9, 15, v8")
            B("v_add_u32 v13, s45, v13")
            B("s_movk_i32 s40, 0x400")
            B(f"s_branch {L}_GO")
        B(f"{L}_W4:")
        if it == 1:
            B("s_cmp_ge_u32 s28, 1200")
            B(f"s_cbranch_scc1 {L}_W3")
        B("s_sub_u32 s41, s28, 512")
        B("s_and_b32 s42, s41, 7")
        B("s_lshr_b32 s43, s41, 3")
        B("s_mov_b32 s8, s22")
        B("s_mov_b32 s9, s23")
        B(f"s_mov_b32 s10, {1376 * 1024}")
        B("s_lshl_b32 s44, s43, 4")
        B("v_lshl_add_u32 v12, v4, 3, s44")
        B("v_lshlrev_b32 v12, 10, v12")
        B("s_lshl_b32 s45, s42, 7")
        B("v_lshl_add_u32 v13, v3, 2, s45")
        B("v_add_u32 v12, v12, v13")
        B(f"s_mul_i32 s45, s42, {2 * 86 * 1024}")
        B("s_lshl_b32 s46, s43, 10")
        B("s_add_u32 s45, s45, s46")
        B(f"s_add_u32 s45, s45, {WS_W4P - WS_W1P}")
        B(f"v_mul_u32_u24 v13, {86 * 1024}, v9")
        B("v_add3_u32 v13, v13, v8, s45")
        B("s_movk_i32 s40, 0x400")
        if it == 1:
            B(f"s_branch {L}_GO")
            B(f"{L}_W3:")
            B("s_sub_u32 s41, s28, 1200")
            B("s_and_b32 s43, s41, 15")
            B("s_lshr_b32 s42, s41, 4")
            B("s_mov_b32 s8, s20")
            B("s_mov_b32 s9, s21")
            B(f"s_mov_b32 s10, {512 * 2752}")
            B("v_and_b32 v12, 1, v6")
            B("v_lshlrev_b32 v12, 4, v12")
            B("v_lshrrev_b32 v13, 1, v6")
            B("v_lshl_add_u32 v12, v13, 3, v12")
            B("s_lshl_b32 s44, s43, 5")
            B("v_add_u32 v12, s44, v12")
            B("v_mul_u32_u24 v12, 2752, v12")
            B("s_lshl_b32 s45, s42, 6")
            B("v_lshl_add_u32 v13, v5, 2, s45")
            B("v_add_u32 v12, v12, v13")
            B("s_lshl_b32 s45, s42, 15")
            B("s_lshl_b32 s46, s43, 10")
            B("s_add_u32 s45, s45, s46")
            B(f"s_add_u32 s45, s45, {WS_W3P - WS_W1P}")
            B("v_lshl_add_u32 v13, v11, 14, v10")
            B("v_add_u32 v13, s45, v13")
            B("s_movk_i32 s40, 2752")
        B(f"{L}_GO:")
        B("s_mov_b32 s47, 0")
        for i in range(8):
            B(f"buffer_load_dword v{R + i}, v12, s[8:11], s47 offen")
            if i < 7:
                B("s_add_u32 s47, s47, s40")
        for i in range(4):
            B(f"v_perm_b32 v{R + 8 + i}, v{R + 2 * i + 1}, v{R + 2 * i}, s60")
            B(f"v_perm_b32 v{R + 12 + i}, v{R + 2 * i + 1}, v{R + 2 * i}, s61")
        B(f"buffer_store_dwordx4 {v(R + 8, 4)}, v13, s[16:19], 0 offen")
        B(f"buffer_store_dwordx4 {v(R + 12, 4)}, v13, s[16:19], 0 offen offset:16")
    B("K2_FIN:")
    if opts.get("trace"):
        B.raw("s_waitcnt vmcnt(0)")
    trace_end(B, opts, 2, 26, 0)
    B("K2_END:")
    A.ins += B.ins
    return A, 256, 256
```

```python
import sys, os
sys.path.insert(0, os.path.dirname(os.path.abspath(__file__)))
import k12
HDR = open("sequential_preLN__ssm_conv_h3__mixer_s_mlp__prompt.s.ref").read().split("; Override launch")[0]
KD = """.section .rodata,"a"
.p2align 6
.amdhsa_kernel {name}
  .amdhsa_next_free_vgpr {vgpr}
  .amdhsa_next_free_sgpr 102
  .amdhsa_accum_offset {acc}
  .amdhsa_group_segment_fixed_size 0
  .amdhsa_kernarg_size 112
  .amdhsa_user_sgpr_count 2
  .amdhsa_user_sgpr_kernarg_segment_ptr 1
  .amdhsa_system_sgpr_workgroup_id_x 1
  .amdhsa_float_denorm_mode_32 3
.end_amdhsa_kernel
"""
def kernel(name, A, vgpr, acc):
    t = A.text()
    print(name, dict(A.stats()), file=sys.stderr)
    return f".text\n.globl {name}\n.p2align 8\n.type {name},@function\n{name}:\n{t}\n    s_endpgm\n" + KD.format(name=name, vgpr=vgpr, acc=acc)

def module(parts, launches):
    hdr = HDR + "".join(f"; @launch kernel={n} grid=({g},1,1) block=({b},1,1) lds={l}\n" for n, g, b, l in launches)
    return hdr + '.amdgcn_target "amdgcn-amd-amdhsa--gfx950"\n' + "\n".join(parts)

def build(opts=None):
    opts = opts or {}
    parts = [kernel("k1_kernel", *k12.gen_k1(opts)), kernel("k2_kernel", *k12.gen_k2(opts))]
    launches = [("k1_kernel", 256, 256, 0), ("k2_kernel", 512, 256, k12.K2_LDS)]
    if not opts.get("no_k3"):
        import k3
        parts.append(kernel("k3_kernel", *k3.gen_k3(opts)))
        launches.append(("k3_kernel", 256, 256, k3.K3_LDS))
    if opts.get("pre") or opts.get("post"):
        from asmgen import Asm
        parts.append(kernel("e_kernel", Asm(), 8, 8))
        launches = [("e_kernel", 256, 256, 0)] * opts.get("pre", 0) + launches + [("e_kernel", 256, 256, 0)] * opts.get("post", 0)
    if opts.get("probe"):
        from asmgen import Asm
        P = Asm()
        P("s_cmp_ge_u32 s2, 256")
        P("s_cbranch_scc1 PR_END")
        P("v_lshlrev_b32 v6, 7, v0")
        items = {2: [(k12.A_WS, 64 << 20, 32 << 20)], 3: [(k12.A_WS, 0, 32 << 20)], 4: [(k12.A_BX, 0, 2 << 20)], 5: [(k12.A_WS, 224 << 20, 32 << 20)],
                 6: [(k12.A_Q, 0, 2 << 20), (k12.A_K, 0, 2 << 20), (k12.A_V, 0, 2 << 20), (k12.A_SSMK, 0, 2 << 20), (k12.A_W1, 0, 512 << 10), (k12.A_W2, 0, 512 << 10), (k12.A_W3, 0, 1376 << 10), (k12.A_W4, 0, 1376 << 10)],
                 7: [(k12.A_OUT, 0, 2 << 20)], 8: [(k12.A_WS, 128 << 20, 32 << 20)]}[opts["probe"]]
        r = 10
        for (arg, off, size) in items:
            P(f"s_load_dwordx2 s[4:5], s[0:1], {arg}")
            k12.srd(P, 8, 4, off, size)
            per = max(size // 256, 128)
            P(f"s_mul_i32 s20, s2, {per}")
            if per < 32768:
                P(f"v_cmp_gt_u32 vcc, {per // 128}, v0")
                P("v_mov_b32 v7, 0x40000000")
                P("v_cndmask_b32 v7, v7, v6, vcc")
                P(f"buffer_load_dword v{r}, v7, s[8:11], s20 offen"); r += 1
            else:
                for k in range(per // 32768):
                    P(f"buffer_load_dword v{r}, v6, s[8:11], s20 offen"); r += 1
                    P("s_add_u32 s20, s20, 32768")
        P.wait_vm()
        P("PR_END:")
        parts.append(kernel("p_kernel", P, 32, 32))
        launches = [("p_kernel", 256, 256, 0)] + launches
    if opts.get("rep"):
        launches = launches * opts["rep"]
    return module(parts, launches)

if __name__ == "__main__":
    out = sys.argv[1]
    opts = {}
    for a in sys.argv[2:]:
        k, _, val = a.partition("=")
        opts[k] = int(val) if val else 1
    open(out, "w").write(build(opts))
```

```python
import re

REG_RE = re.compile(r'^(-?)(abs\()?([vas])(\d+)\)?$')
RNG_RE = re.compile(r'^(-?)([vas])\[(\d+):(\d+)\]$')

TRANS = ("v_exp_f32", "v_log_f32", "v_rcp_f32", "v_rsq_f32", "v_sqrt_f32", "v_sin_f32", "v_cos_f32")


def regs_of(op):
    op = op.strip()
    m = REG_RE.match(op)
    if m:
        return {m.group(3) + m.group(4)}
    m = RNG_RE.match(op)
    if m:
        return {m.group(2) + str(i) for i in range(int(m.group(3)), int(m.group(4)) + 1)}
    if op in ("vcc", "vcc_lo", "vcc_hi"):
        return {"vcc"}
    if op in ("exec", "exec_lo", "exec_hi"):
        return {"exec"}
    if op == "m0":
        return {"m0"}
    return set()


def split_ops(s):
    out, depth, cur = [], 0, ""
    for ch in s:
        if ch in "[(":
            depth += 1
        if ch in "])":
            depth -= 1
        if ch == "," and depth == 0:
            out.append(cur.strip())
            cur = ""
        else:
            cur += ch
    if cur.strip():
        out.append(cur.strip())
    return out


class Ins:
    __slots__ = ("text", "mn", "kind", "rd", "wr", "cond", "states", "passes", "A", "B", "C", "D",
                 "wide_data", "is_dpp", "is_trans", "is_perm", "is_rdlane", "lds_dma", "sgpr_rd", "label", "sdwa_dst")

    def __init__(self, text, cond):
        self.text = text
        self.cond = cond
        self.rd, self.wr = set(), set()
        self.states = 1
        self.passes = 0
        self.A = self.B = self.C = self.D = set()
        self.wide_data = set()
        self.is_dpp = self.is_trans = self.is_perm = self.is_rdlane = self.lds_dma = False
        self.sdwa_dst = False
        self.label = None
        t = text.split(";")[0].strip()
        if not t:
            self.kind, self.mn, self.states = "none", "", 0
            return
        if t.endswith(":") or t.startswith("."):
            self.kind, self.mn, self.states = "none", "", 0
            if t.endswith(":"):
                self.label = t[:-1]
            return
        parts = t.split(None, 1)
        mn = self.mn = parts[0]
        rest = parts[1] if len(parts) > 1 else ""
        ops = split_ops(rest)
        mods = ""
        if ops:
            last = ops[-1].split(None, 1)
            if len(last) > 1:
                ops[-1], mods = last[0], last[1]
        R = [regs_of(o) for o in ops]
        allr = set().union(*R) if R else set()
        if mn.startswith("v_mfma"):
            self.kind = "mfma"
            self.D, self.A, self.B, self.C = R[0], R[1], R[2], R[3]
            self.wr = set(R[0])
            self.rd = R[1] | R[2] | R[3]
            self.passes = 8 if "32x32" in mn else 4
        elif mn.startswith("v_"):
            self.kind = "valu"
            base = mn
            for sfx in ("_e32", "_e64", "_dpp", "_sdwa"):
                if base.endswith(sfx):
                    base = base[: -len(sfx)]
            self.is_dpp = mn.endswith("_dpp")
            self.is_trans = base in TRANS
            if mn.endswith("_sdwa") and "dst_sel:DWORD" not in mods:
                self.sdwa_dst = True
            if base == "v_nop":
                pass
            elif base.startswith("v_permlane") and "swap" in base:
                self.is_perm = True
                self.rd = set(allr)
                self.wr = set(allr)
            elif base.startswith("v_cmp"):
                assert not base.startswith("v_cmpx")
                self.wr = set(R[0])
                self.rd = set().union(*R[1:])
            elif base in ("v_add_co_u32", "v_sub_co_u32", "v_addc_co_u32", "v_subb_co_u32"):
                self.wr = R[0] | R[1]
                self.rd = set().union(*R[2:])
            else:
                self.wr = set(R[0])
                self.rd = set().union(*R[1:]) if len(R) > 1 else set()
                if base in ("v_fmac_f32", "v_dot2c_f32_bf16", "v_writelane_b32") or self.is_dpp or self.sdwa_dst:
                    self.rd |= R[0]
                if base in ("v_readlane_b32", "v_readfirstlane_b32"):
                    self.is_rdlane = True
        elif mn.startswith("ds_"):
            self.kind = "ds"
            if mn.startswith("ds_read") or mn.startswith("ds_bpermute") or mn.startswith("ds_permute") or mn.startswith("ds_swizzle"):
                self.wr = set(R[0])
                self.rd = set().union(*R[1:])
            else:
                self.rd = set(allr)
        elif mn.startswith("buffer_") or mn.startswith("global_"):
            self.kind = "vmem"
            is_lds = " lds" in (" " + mods) or "_lds_" in mn
            if mn in ("buffer_wbl2", "buffer_inv"):
                pass
            elif is_lds:
                self.lds_dma = True
                self.rd = set(allr) | {"m0"}
            elif "_load_" in mn:
                self.wr = set(R[0])
                self.rd = set().union(*R[1:])
            elif "_atomic_" in mn and "sc0" in mods:
                self.wr = set(R[0])
                self.rd = set(allr)
            else:
                self.rd = set(allr)
                if mn.endswith("x4") or mn.endswith("x3"):
                    self.wide_data = R[0] if mn.startswith("buffer_") else R[1]
        elif mn.startswith("s_load") or mn.startswith("s_buffer_load") or mn in ("s_memtime", "s_memrealtime"):
            self.kind = "smem"
            self.wr = set(R[0])
            self.rd = set().union(*R[1:]) if len(R) > 1 else set()
        elif mn == "s_nop":
            self.kind = "nop"
            self.states = int(ops[0]) + 1
        elif mn == "s_waitcnt":
            self.kind = "wait"
        elif mn.startswith("s_"):
            self.kind = "salu"
            if mn.startswith("s_cmp") or mn.startswith("s_bitcmp") or mn.startswith("s_cbranch") or mn in (
                    "s_branch", "s_barrier", "s_endpgm", "s_sleep", "s_setprio"):
                self.rd = set(allr)
                if "vcc" in mn:
                    self.rd |= {"vcc"}
            else:
                self.wr = set(R[0]) if R else set()
                self.rd = set().union(*R[1:]) if len(R) > 1 else set()
                if mn in ("s_addk_i32", "s_mulk_i32", "s_cmov_b32", "s_cmov_b64"):
                    self.rd |= R[0]
                if "saveexec" in mn:
                    self.wr |= {"exec"}
                    self.rd |= {"exec"}
        else:
            raise ValueError("unknown instruction: " + text)


def is_s(r):
    return r[0] == "s" or r == "vcc"


def need_states(p, c):
    n = 0
    if p.kind == "valu":
        vw = {r for r in p.wr if r[0] in "va" and r != "vcc"}
        sw = {r for r in p.wr if is_s(r)}
        if vw:
            if c.kind == "mfma" and vw & c.rd:
                n = max(n, 2)
            if c.kind == "valu" and vw & c.rd:
                if c.is_perm or c.is_dpp:
                    n = max(n, 2)
                if c.is_rdlane:
                    n = max(n, 1)
                if p.is_trans or p.sdwa_dst:
                    n = max(n, 1)
        if sw:
            if c.kind in ("valu", "mfma") and sw & c.rd:
                n = max(n, 4 if c.mn.startswith("v_readlane") or c.mn.startswith("v_writelane") else 2)
            if c.kind == "vmem" and sw & c.rd:
                n = max(n, 5)
            if c.kind in ("salu", "smem") and sw & c.rd:
                n = max(n, 1)
    elif p.kind == "mfma":
        big = {4: 8, 8: 12}[p.passes]
        ovl = {4: 6, 8: 10}[p.passes]
        war = {4: 3, 8: 7}[p.passes]
        if c.kind == "mfma":
            if p.D & (c.A | c.B):
                n = max(n, big)
            if p.D & c.C and not (p.D == c.C and p.passes == c.passes):
                n = max(n, ovl)
            if p.D & c.D and not (p.D == c.C and p.passes == c.passes):
                n = max(n, ovl)
        elif c.kind in ("valu", "vmem", "ds"):
            if p.D & (c.rd | c.wr):
                n = max(n, big)
            if p.C & c.wr:
                n = max(n, war)
    elif p.kind == "vmem" and p.wide_data:
        if c.kind in ("valu", "mfma") and p.wide_data & c.wr:
            n = max(n, 2)
        elif p.wide_data & c.wr:
            n = max(n, 1)
    elif p.kind == "salu":
        if "m0" in p.wr and c.lds_dma:
            n = max(n, 1)
    return n


def cost(i):
    if i.kind == "mfma":
        return 4 * i.passes
    if i.kind == "valu":
        return 8 if i.is_trans else 4
    if i.kind == "ds":
        return 0
    return 0


class Asm:
    def __init__(self):
        self.ins = []
        self.vm = []
        self.lg = []
        self.cond = 0
        self.ncond = 0
        self.uid = 0
        self.track = True
        self.bg = []
        self.bg_every = 0
        self.bg_kinds = ("valu", "mfma")
        self._bgc = 0
        self._inbg = False
        self.nlabel = 0

    def _raw(self, text):
        i = Ins(text, self.cond)
        self.ins.append(i)
        return i

    def raw(self, text):
        for l in text.split("\n"):
            if l.strip():
                self._raw(l.strip())

    def _count_after(self, q, idx):
        return sum(1 for e in q[idx + 1:] if e["cond"] == 0 or (e["cond"] == self.cond))

    def _cap(self, q, idx, cap):
        while self._count_after(q, idx) > cap:
            idx += 1
        return idx

    def _wait(self, vm=None, lg=None):
        parts = []
        if vm is not None:
            assert vm <= 62
            parts.append(f"vmcnt({vm})")
        if lg is not None:
            assert lg <= 14
            parts.append(f"lgkmcnt({lg})")
        if parts:
            self._raw("s_waitcnt " + " ".join(parts))

    def _retire(self, q, idx):
        if self.cond == 0:
            del q[: idx + 1]
        else:
            for e in q[: idx + 1]:
                e["done_in"] = self.cond

    def _pending(self, e):
        return e.get("done_in") != self.cond or self.cond == 0 and e.get("done_in") is not None

    def __call__(self, text):
        for l in text.split("\n"):
            l = l.strip()
            if l:
                self.one(l)

    def one(self, text):
        i = Ins(text, self.cond)
        touched = i.rd | i.wr
        vmw = lgw = None
        vi = li = None
        for k in range(len(self.vm) - 1, -1, -1):
            e = self.vm[k]
            if e["regs"] & touched and not (self.cond and e.get("done_in") == self.cond):
                vi = k
                break
        for k in range(len(self.lg) - 1, -1, -1):
            e = self.lg[k]
            if e["regs"] & touched and not (self.cond and e.get("done_in") == self.cond):
                li = k
                break
        if vi is not None:
            vi = self._cap(self.vm, vi, 62)
            vmw = self._count_after(self.vm, vi)
            self._retire(self.vm, vi)
        if li is not None:
            if any(e["smem"] for e in self.lg):
                lgw = 0
                self._retire(self.lg, len(self.lg) - 1)
            else:
                li = self._cap(self.lg, li, 14)
                lgw = self._count_after(self.lg, li)
                self._retire(self.lg, li)
        self._wait(vmw, lgw)
        self.ins.append(i)
        self.uid += 1
        if i.kind == "vmem":
            self.vm.append(dict(regs=set(i.wr), cond=self.cond, id=self.uid))
        elif i.kind == "ds":
            self.lg.append(dict(regs=set(i.wr), cond=self.cond, smem=False, id=self.uid))
        elif i.kind == "smem":
            self.lg.append(dict(regs=set(i.wr), cond=self.cond, smem=True, id=self.uid))
        if self.bg_every and self.bg and not self._inbg and self.cond == 0:
            self._bgc += cost(i)
            if self._bgc >= self.bg_every and i.kind in self.bg_kinds:
                self._bgc = min(self._bgc - self.bg_every, self.bg_every // 2)
                self.bg_pop()
        return i

    def bg_pop(self, n=1):
        self._inbg = True
        for _ in range(n):
            if self.bg:
                for x in self.bg.pop(0):
                    self.one(x)
        self._inbg = False

    def bg_start(self, groups, every, kinds=("valu", "mfma")):
        self.bg = self.bg + list(groups)
        self.bg_every = every
        self.bg_kinds = kinds
        self._bgc = 0

    def bg_stop(self, flush=True):
        self.bg_every = 0
        if flush:
            self.bg_pop(len(self.bg))

    def mark(self):
        return self.uid

    def wait_vm(self, tok=None):
        tok = self.uid if tok is None else tok
        idx = None
        for k, e in enumerate(self.vm):
            if e["id"] <= tok:
                idx = k
        if idx is None:
            return
        idx = self._cap(self.vm, idx, 62)
        n = self._count_after(self.vm, idx)
        self._retire(self.vm, idx)
        self._wait(vm=n)

    def wait_lg(self, tok=None):
        tok = self.uid if tok is None else tok
        idx = None
        for k, e in enumerate(self.lg):
            if e["id"] <= tok:
                idx = k
        if idx is None:
            return
        if any(e["smem"] for e in self.lg):
            self._retire(self.lg, len(self.lg) - 1)
            self._wait(lg=0)
            return
        idx = self._cap(self.lg, idx, 14)
        n = self._count_after(self.lg, idx)
        self._retire(self.lg, idx)
        self._wait(lg=n)

    def barrier(self, vm_tok=False, lg=True):
        if vm_tok is not False:
            self.wait_vm(vm_tok)
        if lg:
            self.wait_lg()
        self._raw("s_barrier")

    def label(self, base="L"):
        self.nlabel += 1
        return f"{base}_{self.nlabel}"

    def begin_cond(self):
        assert self.cond == 0
        self.ncond += 1
        self.cond = self.ncond

    def end_cond(self):
        self.cond = 0
        for q in (self.vm, self.lg):
            for e in q:
                e.pop("done_in", None)

    def either(self, branch_else, fa, fb):
        lb, le = self.label("ALT"), self.label("ALTE")
        self._raw(f"{branch_else} {lb}")
        import copy
        vm0, lg0, uid0 = copy.deepcopy(self.vm), copy.deepcopy(self.lg), self.uid
        n0 = len(self.ins)
        fa()
        self._raw(f"s_branch {le}")
        vm1, lg1, uid1 = self.vm, self.lg, self.uid
        self.vm, self.lg, self.uid = vm0, lg0, uid0
        self._raw(f"{lb}:")
        n1 = len(self.ins)
        fb()
        assert len(self.vm) == len(vm1) and len(self.lg) == len(lg1) and self.uid == uid1
        self._raw(f"{le}:")
        self.ncond += 1
        for i in self.ins[n0:n1]:
            i.cond = self.ncond
        self.ncond += 1
        for i in self.ins[n1:]:
            i.cond = self.ncond

    def text(self):
        out = []
        for c in self.ins:
            if c.kind not in ("none", "nop", "wait"):
                need = 0
                dist = 0
                for p in reversed(out):
                    if dist >= 20:
                        break
                    n = need_states(p, c)
                    if n > dist:
                        need = max(need, n - dist)
                    if p.cond == 0 or p.cond == c.cond:
                        dist += p.states
                while need > 0:
                    k = min(need, 16)
                    out.append(Ins(f"s_nop {k - 1}", c.cond))
                    need -= k
            out.append(c)
        self.final = out
        return "\n".join(("" if i.kind == "none" else "    ") + i.text for i in out)

    def stats(self):
        from collections import Counter
        return Counter(i.kind for i in self.final)


def interleave(main, fill, ratio=None):
    out = []
    n, m = len(main), len(fill)
    j = 0
    for k, x in enumerate(main):
        out.append(x)
        tgt = min(m, (m * (k + 1) + n - 1) // n) if ratio is None else min(m, int(ratio * (k + 1)))
        while j < tgt:
            out.append(fill[j])
            j += 1
    out.extend(fill[j:])
    return out


def v(i, n=1):
    return f"v{i}" if n == 1 else f"v[{i}:{i + n - 1}]"


def a(i, n=1):
    return f"a{i}" if n == 1 else f"a[{i}:{i + n - 1}]"


def s(i, n=1):
    return f"s{i}" if n == 1 else f"s[{i}:{i + n - 1}]"
```

```python
import struct
from asmgen import *

A_Q, A_K, A_V, A_SH, A_SSMK, A_SSMD, A_BX, A_W1, A_W2, A_W3, A_W4, A_OUT, A_DBG, A_WS = [8 * i for i in range(14)]
CL_SZ = 86 * 2048
WS_CL = 0x000000
WS_Y = 0x600000
WS_W1P = 0x800000
WS_W2P = 0x880000
WS_W3P = 0x900000
WS_W4P = 0xA80000
WS_XC = 0xC00000
XC_CL = 68 * 1024
WS_SM = 0xE40000
SM_ST = 0
SM_ST2 = 0x10000
SM_FLAG = 0x50000
SM_LF = 0x58000
SM_ID = 0x58400
SM_GF = 0x58800
SM_ZEND = 0x59000
SM_XST = 0x5A000
SM_SZ = 0x5E000
WS_END = WS_SM + SM_SZ
WS_TRACE = 0x1800000
SRD3 = 0x20000
HUGE = 0x40000000


def fbits(x):
    return hex(struct.unpack("<I", struct.pack("<f", x))[0])


def srd(A, d, base, off, size):
    if off == 0:
        A(f"s_mov_b32 s{d}, s{base}")
        A(f"s_mov_b32 s{d + 1}, s{base + 1}")
    else:
        o = hex(off) if isinstance(off, int) else off
        A(f"s_add_u32 s{d}, s{base}, {o}")
        A(f"s_addc_u32 s{d + 1}, s{base + 1}, 0")
    A(f"s_mov_b32 s{d + 2}, {hex(size) if isinstance(size, int) else size}")
    A(f"s_mov_b32 s{d + 3}, {hex(SRD3)}")


def srdn(i):
    return f"s[{i}:{i + 3}]"


def unpack(A, lo, hi, src):
    A(f"v_lshlrev_b32 v{lo}, 16, v{src}")
    A(f"v_and_b32 v{hi}, 0xffff0000, v{src}")


class Tracer:
    def __init__(self, A, on, base=80):
        self.A, self.on, self.base, self.n, self.names = A, on, base, 0, []

    def __call__(self, name, real=False):
        if self.on:
            A = self.A
            if self.n:
                A(f"s_mov_b32 s{self.base + self.n - 1}, s100")
            A("s_memrealtime s[100:101]" if real else "s_memtime s[100:101]")
            self.n += 1
            self.names.append(name)

    def finish(self, wsreg, kidx, sd, vt, extra=None):
        if not self.on:
            return
        A = self.A
        A.wait_vm()
        self("end")
        self("rend", True)
        A(f"s_mov_b32 s{self.base + self.n - 1}, s100")
        assert self.base + self.n <= 100, self.n
        srd(A, sd, wsreg, WS_TRACE + 0x100000 * kidx, 0x100000)
        A(f"v_lshrrev_b32 v{vt}, 6, v0")
        A(f"v_readfirstlane_b32 s100, v{vt}")
        A("s_lshl2_add_u32 s100, s2, s100")
        A("s_lshl_b32 s100, s100, 7")
        A("s_mov_b64 exec, 1")
        for k in range(self.n):
            A(f"v_mov_b32 v{vt}, s{self.base + k}")
            A(f"buffer_store_dword v{vt}, off, {srdn(sd)}, s100 offset:{4 * k}")
        if extra is not None:
            A(f"v_mov_b32 v{vt}, s{extra}")
            A(f"buffer_store_dword v{vt}, off, {srdn(sd)}, s100 offset:124")
        A("s_mov_b64 exec, -1")


def rowstats(A, nrows, src, S1, S2, TT, s_inv):
    R = range(nrows)
    for r in R:
        b, t = src + 8 * r, TT + 4 * r
        A(f"v_pk_add_f32 {v(t, 2)}, {v(b, 2)}, {v(b + 2, 2)}")
        A(f"v_pk_mul_f32 {v(t + 2, 2)}, {v(b, 2)}, {v(b, 2)}")
    for k in (4, 6):
        for r in R:
            b, t = src + 8 * r, TT + 4 * r
            A(f"v_pk_add_f32 {v(t, 2)}, {v(t, 2)}, {v(b + k, 2)}")
    for k in (2, 4, 6):
        for r in R:
            b, t = src + 8 * r, TT + 4 * r
            A(f"v_pk_fma_f32 {v(t + 2, 2)}, {v(b + k, 2)}, {v(b + k, 2)}, {v(t + 2, 2)}")
    for r in R:
        A(f"v_add_f32 v{S1 + r}, v{TT + 4 * r}, v{TT + 4 * r + 1}")
        A(f"v_add_f32 v{S2 + r}, v{TT + 4 * r + 2}, v{TT + 4 * r + 3}")
    for r in range(nrows, 4):
        A(f"v_mov_b32 v{S1 + r}, 0")
        A(f"v_mov_b32 v{S2 + r}, 0")
    for S in (S1, S2):
        A(f"v_permlane32_swap_b32 v{S}, v{S + 2}")
        A(f"v_permlane32_swap_b32 v{S + 1}, v{S + 3}")
    for S in (S1, S2):
        A(f"v_add_f32 v{S}, v{S}, v{S + 2}")
        A(f"v_add_f32 v{S + 1}, v{S + 1}, v{S + 3}")
    for S in (S1, S2):
        A(f"v_permlane16_swap_b32 v{S}, v{S + 1}")
    for S in (S1, S2):
        A(f"v_add_f32 v{S}, v{S}, v{S + 1}")
    for sh in (8, 4, 2, 1):
        for S in (S1, S2):
            A(f"v_add_f32_dpp v{S}, v{S}, v{S} row_ror:{sh} row_mask:0xf bank_mask:0xf")
    A(f"v_mul_f32 v{S1}, s{s_inv}, v{S1}")
    A(f"v_mul_f32 v{S1 + 1}, v{S1}, v{S1}")
    A(f"v_fma_f32 v{S2}, v{S2}, s{s_inv}, -v{S1 + 1}")
    A(f"v_max_f32 v{S2}, 0, v{S2}")
```

```python
import sys, os
sys.path.insert(0, os.path.dirname(os.path.abspath(__file__)))
import k12
HDR = open("sequential_preLN__ssm_conv_h3__mixer_s_mlp__prompt.s.ref").read().split("; Override launch")[0]
KD = """.section .rodata,"a"
.p2align 6
.amdhsa_kernel {name}
  .amdhsa_next_free_vgpr {vgpr}
  .amdhsa_next_free_sgpr 102
  .amdhsa_accum_offset {acc}
  .amdhsa_group_segment_fixed_size 0
  .amdhsa_kernarg_size 112
  .amdhsa_user_sgpr_count 2
  .amdhsa_user_sgpr_kernarg_segment_ptr 1
  .amdhsa_system_sgpr_workgroup_id_x 1
  .amdhsa_float_denorm_mode_32 3
.end_amdhsa_kernel
"""
def kernel(name, A, vgpr, acc):
    t = A.text()
    if getattr(A, "do_align", False):
        t = A.align_runs()
    print(name, dict(A.stats()), file=sys.stderr)
    return f".text\n.globl {name}\n.p2align 8\n.type {name},@function\n{name}:\n{t}\n    s_endpgm\n" + KD.format(name=name, vgpr=vgpr, acc=acc)

def module(parts, launches):
    hdr = HDR + "".join(f"; @launch kernel={n} grid=({g},1,1) block=({b},1,1) lds={l}\n" for n, g, b, l in launches)
    return hdr + '.amdgcn_target "amdgcn-amd-amdhsa--gfx950"\n' + "\n".join(parts)

NAME = "sequential_preLN__ssm_conv_h3__mixer_s_mlp__prompt_kernel"
def gbar(k):
    return f"""
    s_waitcnt vmcnt(0) lgkmcnt(0)
    s_barrier
    v_lshrrev_b32 v1, 6, v0
    s_load_dwordx2 s[4:5], s[0:1], 96
    v_readfirstlane_b32 s6, v1
    s_waitcnt lgkmcnt(0)
    s_cmp_lg_u32 s6, 0
    s_cbranch_scc1 GB{k}_E
    buffer_wbl2 sc1
    s_waitcnt vmcnt(0)
    s_mov_b64 exec, 1
    v_mov_b32 v1, {128 * k}
    v_mov_b32 v2, 1
    global_atomic_add v1, v2, s[4:5] sc1
    s_mov_b32 s7, 0
GB{k}_P:
    s_sleep 2
    global_load_dword v2, v1, s[4:5] sc1
    s_add_u32 s7, s7, 1
    s_cmp_gt_u32 s7, 0x100000
    s_cbranch_scc1 GB{k}_T
    s_waitcnt vmcnt(0)
    v_cmp_gt_u32 vcc, 0x100, v2
    s_cbranch_vccnz GB{k}_P
GB{k}_T:
    s_waitcnt vmcnt(0)
    s_mov_b64 exec, -1
    buffer_inv sc1
    s_waitcnt vmcnt(0)
GB{k}_E:
    s_barrier
"""
def build_mono(opts):
    import k3
    t1 = k12.gen_k1(opts)[0].text()
    t2 = k12.gen_k2(opts)[0].text()
    t3 = k3.gen_k3(opts)[0].text()
    t1 = t1.replace("s_cbranch_scc1 K1_END", "s_cbranch_scc1 K3_END")
    conv, relay = t2.split("K2_RELAY:")
    conv = conv.replace("s_cbranch_scc1 K2_RELAY", "s_nop 0").replace("s_endpgm", "")
    relay = relay.replace("s_sub_u32 s28, s2, 256", "s_mov_b32 s28, s2")
    body = t1 + "\n s_waitcnt vmcnt(0)\n" + relay + gbar(0) + conv + gbar(1) + t3
    txt = f".text\n.globl {NAME}\n.p2align 8\n.type {NAME},@function\n{NAME}:\n{body}\n    s_endpgm\n" + KD.format(name=NAME, vgpr=512, acc=256)
    if opts.get("mono") == 2:
        return module([txt], [(NAME, 256, 256, k3.K3_LDS)])
    return HDR + f"; @launch grid=(256,1,1) block=(256,1,1) lds={k3.K3_LDS}\n" + '.amdgcn_target "amdgcn-amd-amdhsa--gfx950"\n' + txt

def build(opts=None):
    opts = opts or {}
    if opts.get("mono"):
        return build_mono(opts)
    parts = [kernel("k1_kernel", *k12.gen_k1(opts)), kernel("k2_kernel", *k12.gen_k2(opts))]
    launches = [("k1_kernel", 256, 256, 0), ("k2_kernel", 512, 256, k12.K2_LDS)]
    if not opts.get("no_k3"):
        import k3
        parts.append(kernel("k3_kernel", *k3.gen_k3(opts)))
        launches.append(("k3_kernel", 256, 256, k3.K3_LDS))
    if opts.get("pre") or opts.get("post"):
        from asmgen import Asm
        parts.append(kernel("e_kernel", Asm(), 8, 8))
        launches = [("e_kernel", 256, 256, 0)] * opts.get("pre", 0) + launches + [("e_kernel", 256, 256, 0)] * opts.get("post", 0)
    if opts.get("probe"):
        from asmgen import Asm
        P = Asm()
        P("s_cmp_ge_u32 s2, 256")
        P("s_cbranch_scc1 PR_END")
        P("v_lshlrev_b32 v6, 7, v0")
        if opts["probe"] in (9, 10):
            P("s_getpc_b64 s[4:5]")
            P.raw("PCREF:")
            P("s_sub_u32 s4, s4, PCREF-k1_kernel")
            P("s_subb_u32 s5, s5, 0")
            P("s_mov_b32 s8, s4")
            P("s_mov_b32 s9, s5")
            P("s_mov_b32 s10, PCREF-k1_kernel")
            P("s_mov_b32 s11, 0x20000")
            P("buffer_load_dword v9, v6, s[8:11], 0 offen")
        items = {9: [], 10: [(k12.A_Q, 0, 2 << 20), (k12.A_K, 0, 2 << 20), (k12.A_V, 0, 2 << 20), (k12.A_SSMK, 0, 2 << 20), (k12.A_W1, 0, 512 << 10), (k12.A_W2, 0, 512 << 10), (k12.A_W3, 0, 1376 << 10), (k12.A_W4, 0, 1376 << 10), (k12.A_WS, 0, 24 << 20), (k12.A_OUT, 0, 2 << 20)], 2: [(k12.A_WS, 64 << 20, 32 << 20)], 3: [(k12.A_WS, 0, 32 << 20)], 4: [(k12.A_BX, 0, 2 << 20)], 5: [(k12.A_WS, 224 << 20, 32 << 20)],
                 6: [(k12.A_Q, 0, 2 << 20), (k12.A_K, 0, 2 << 20), (k12.A_V, 0, 2 << 20), (k12.A_SSMK, 0, 2 << 20), (k12.A_W1, 0, 512 << 10), (k12.A_W2, 0, 512 << 10), (k12.A_W3, 0, 1376 << 10), (k12.A_W4, 0, 1376 << 10)],
                 7: [(k12.A_OUT, 0, 2 << 20)], 8: [(k12.A_WS, 128 << 20, 32 << 20)]}[opts["probe"]]
        r = 10
        for (arg, off, size) in items:
            P(f"s_load_dwordx2 s[4:5], s[0:1], {arg}")
            k12.srd(P, 8, 4, off, size)
            per = max(size // 256, 128)
            P(f"s_mul_i32 s20, s2, {per}")
            if per < 32768:
                P(f"v_cmp_gt_u32 vcc, {per // 128}, v0")
                P("v_mov_b32 v7, 0x40000000")
                P("v_cndmask_b32 v7, v7, v6, vcc")
                P(f"buffer_load_dword v{r}, v7, s[8:11], s20 offen"); r += 1
            else:
                for k in range(per // 32768):
                    P(f"buffer_load_dword v{r}, v6, s[8:11], s20 offen"); r += 1
                    P("s_add_u32 s20, s20, 32768")
        P.wait_vm()
        P("PR_END:")
        parts.append(kernel("p_kernel", P, 32, 32))
        launches = [("p_kernel", 256, 256, 0)] + launches
    if opts.get("dpre") or opts.get("dpost"):
        from asmgen import Asm
        D = Asm()
        D(f"s_mov_b32 s4, {opts.get('dn', 40)}")
        D.raw("DL:")
        for k in range(128): D(f"v_mul_f32 v{1 + k % 16}, v0, v0")
        D("s_sub_u32 s4, s4, 1")
        D("s_cmp_lg_u32 s4, 0")
        D.raw("s_cbranch_scc1 DL")
        parts.append(kernel("d_kernel", D, 32, 32))
        launches = [("d_kernel", 256, 256, 0)] * opts.get("dpre", 0) + launches + [("d_kernel", 256, 256, 0)] * opts.get("dpost", 0)
    if opts.get("rep"):
        launches = launches * opts["rep"]
    return module(parts, launches)

if __name__ == "__main__":
    out = sys.argv[1]
    opts = {}
    for a in sys.argv[2:]:
        k, _, val = a.partition("=")
        opts[k] = int(val) if val else 1
    open(out, "w").write(build(opts))
```

```python
import struct
from asmgen import *
from k12 import *

STG0, STG1 = 0, 65536
RED = 131072
ST3 = RED + 16384
K3_LDS = ST3 + 1024
YS = STG1

C1 = -2.0 * 0.7978845608028654 * 1.4426950408889634
C2 = C1 * 0.044715
HUGE = 0x40000000


def fbits(x):
    return hex(struct.unpack("<I", struct.pack("<f", x))[0])


sC, sJ, sW, sKH, sNH = 3, 4, 5, 6, 7
SX, SY, SWT, SXC, SHH, SX1, SG, SST, SO = 8, 12, 16, 20, 24, 28, 32, 36, 40
sMODE = 44
sGC = 46
sT = 48
sTILE = 60
sW3 = 63
sFLAG = 66
sSTAT = 68
sTR = 80

vL16 = 2
vPOLL = 3
vB0, vB1, vB0H, vB1H = 4, 5, 6, 7
vA0, vA1, vA2, vA3 = 8, 9, 10, 11
vRW, vRR = 12, 13
vT0, vT1, vT2, vT3 = 14, 15, 16, 17
vOUT = 18
vONE = 19
ACC = 20
BF = 68
RES = 100
TMP = 116
W4X = 148
W2R = 192


def srdn(i):
    return f"s[{i}:{i + 3}]"


def gen_k3(opts):
    A = Asm()
    trace = opts.get("trace")
    ntr = [0]

    def stamp(real=False):
        if trace:
            if ntr[0]:
                A(f"s_mov_b32 s{sTR + ntr[0] - 1}, s100")
            A("s_memrealtime s[100:101]" if real else "s_memtime s[100:101]")
            ntr[0] += 1

    def stores(fn):
        A(f"s_cmp_eq_u32 s{sMODE}, 1")
        A.either("s_cbranch_scc0", lambda: fn(""), lambda: fn(" sc1"))

    def signal(phase, tok=None):
        A.wait_vm(tok)
        A.barrier()
        l = A.label("SIG")
        A(f"s_cmp_lg_u32 s{sW}, 0")
        A.raw(f"s_cbranch_scc1 {l}")
        A.begin_cond()
        A(f"s_lshl_b32 s{sT}, s{sJ}, 2")
        A(f"s_add_u32 s{sT}, s{sT}, s{sFLAG}")
        A("s_mov_b64 exec, 1")
        l2, l3 = A.label("SIGS"), A.label("SIGE")
        A(f"s_cmp_eq_u32 s{sMODE}, 1")
        A.raw(f"s_cbranch_scc0 {l2}")
        A(f"buffer_store_dword v{vONE}, off, {srdn(SST)}, s{sT} offset:{128 * phase}")
        A.raw(f"s_branch {l3}")
        A.raw(f"{l2}:")
        A.raw(f"buffer_store_dword v{vONE}, off, {srdn(SST)}, s{sT} offset:{128 * phase} sc1")
        A.raw(f"{l3}:")
        A("s_mov_b64 exec, -1")
        A.end_cond()
        A.raw(f"{l}:")

    def poll(phase):
        l, le = A.label("POLL"), A.label("POLLE")
        A(f"s_mov_b32 s{sT}, 0")
        A.raw(f"{l}:")
        A.raw(f"buffer_load_dword v{vT0}, v{vPOLL}, {srdn(SST)}, s{sFLAG} offen offset:{128 * phase} sc1")
        A.raw(f"s_add_u32 s{sT}, s{sT}, 1")
        A.raw(f"s_cmp_gt_u32 s{sT}, 0x200000")
        A.raw(f"s_cbranch_scc1 {le}")
        A.raw("s_waitcnt vmcnt(0)")
        A.raw(f"v_cmp_eq_u32 vcc, 0, v{vT0}")
        A.raw(f"s_cbranch_vccnz {l}")
        A.raw(f"{le}:")
        A.raw("s_waitcnt vmcnt(0)")
        del A.vm[:]

    def gelu_pair(x, t, out):
        return [
            f"v_pk_mul_f32 {v(t, 2)}, {v(x, 2)}, {v(x, 2)}",
            f"v_pk_fma_f32 {v(t, 2)}, {v(t, 2)}, s[{sGC}:{sGC + 1}], s[{sGC}:{sGC + 1}] op_sel:[0,1,0] op_sel_hi:[1,1,0]",
            f"v_pk_mul_f32 {v(t, 2)}, {v(t, 2)}, {v(x, 2)}",
            f"v_exp_f32 v{t}, v{t}",
            f"v_exp_f32 v{t + 1}, v{t + 1}",
            f"v_pk_add_f32 {v(t, 2)}, {v(t, 2)}, 1.0 op_sel_hi:[1,0]",
            f"v_rcp_f32 v{t}, v{t}",
            f"v_rcp_f32 v{t + 1}, v{t + 1}",
            f"v_pk_mul_f32 {v(t, 2)}, {v(t, 2)}, {v(x, 2)}",
            f"v_cvt_pk_bf16_f32 v{out}, v{t}, v{t + 1}",
        ]

    def zipped(lists):
        out = []
        for k in range(max(len(x) for x in lists)):
            for x in lists:
                if k < len(x):
                    out.append(x[k])
        return out

    def wload(dst, vaddr, soff, k):
        out = []
        if k and k % 4 == 0:
            out.append(f"s_add_u32 s{soff}, s{soff}, 0x1000")
        out.append(f"buffer_load_dwordx4 {dst}, v{vaddr}, {srdn(SWT)}, s{soff} offen offset:{1024 * (k % 4)}")
        return out

    def w4reg(f):
        if f < 11:
            return v(W4X + 4 * f, 4)
        if f < 27:
            return a(4 * (f - 11), 4)
        return v(W2R + 4 * (f - 27), 4)

    A("s_cmp_ge_u32 s2, 256")
    A("s_cbranch_scc1 K3_END")
    if trace:
        stamp(True)
        stamp()
    A(f"s_load_dwordx2 s[{sT}:{sT + 1}], s[0:1], {A_Q}")
    A(f"s_load_dwordx2 s[{sT + 2}:{sT + 3}], s[0:1], {A_OUT}")
    A(f"s_load_dwordx2 s[{sT + 4}:{sT + 5}], s[0:1], {A_WS}")
    A("v_lshrrev_b32 v2, 6, v0")
    A("v_and_b32 v1, 63, v0")
    A(f"v_readfirstlane_b32 s{sW}, v2")
    A(f"s_and_b32 s{sC}, s2, 7")
    A(f"s_lshl_b32 s{sC}, s{sC}, 2")
    A(f"s_lshr_b32 s{sJ}, s2, 6")
    A(f"s_add_u32 s{sC}, s{sC}, s{sJ}")
    A(f"s_bfe_u32 s{sJ}, s2, 0x30003")
    A(f"s_lshr_b32 s{sKH}, s{sW}, 1")
    A(f"s_and_b32 s{sNH}, s{sW}, 1")
    A(f"v_lshlrev_b32 v{vL16}, 4, v1")
    A(f"s_getreg_b32 s{sMODE}, hwreg(HW_REG_XCC_ID, 0, 4)")
    A(f"s_lshl_b32 s58, s{sC}, 6")
    A(f"s_lshl_b32 s59, s{sJ}, 3")
    A("s_add_u32 s58, s58, s59")
    A(f"v_lshlrev_b32 v{vT0}, 15, v1")
    A(f"s_lshl_b32 s59, s{sW}, 13")
    A("s_lshl2_add_u32 s59, s58, s59")
    A(f"v_add_u32 v{vT0}, s59, v{vT0}")
    A(f"s_cmp_eq_u32 s{sJ}, 0")
    A(f"s_cselect_b32 s57, -16, {hex(HUGE)}")
    A(f"s_cmp_eq_u32 s{sJ}, 7")
    A("s_cselect_b32 s57, 32, s57")
    A(f"v_add_u32 v{vT1}, s57, v{vT0}")
    A(f"s_lshl1_add_u32 s59, s{sW}, s58")
    A("s_lshl_b32 s59, s59, 10")
    A(f"v_add_u32 v{vT2}, s59, v{vL16}")
    A(f"s_cmp_eq_u32 s{sJ}, 0")
    A("s_cselect_b32 s56, -2, 64")
    A(f"s_add_u32 s56, s56, s{sW}")
    A(f"s_cmp_lt_u32 s{sW}, 2")
    A(f"s_cselect_b32 s55, s57, {hex(HUGE)}")
    A(f"s_lshl_b32 s54, s{sC}, 6")
    A("s_add_u32 s54, s54, s56")
    A("s_lshl_b32 s54, s54, 10")
    A(f"s_cmp_eq_u32 s55, {hex(HUGE)}")
    A(f"s_cselect_b32 s54, {hex(HUGE)}, s54")
    A(f"v_add_u32 v{vT3}, s54, v{vL16}")
    A("s_add_u32 s45, s56, 2")
    A("s_lshl_b32 s45, s45, 10")
    A(f"s_cmp_eq_u32 s55, {hex(HUGE)}")
    A(f"s_cselect_b32 s45, {hex(HUGE)}, s45")
    srd(A, SX, sT, 0, 0x200000)
    XR = 20
    A(f"buffer_load_dwordx4 {v(XR, 4)}, v{vT2}, {srdn(SX)}, 0 offen")
    A(f"buffer_load_dwordx4 {v(XR + 4, 4)}, v{vT2}, {srdn(SX)}, 0 offen offset:1024")
    A(f"buffer_load_dwordx4 {v(XR + 8, 4)}, v{vT3}, {srdn(SX)}, 0 offen")
    srd(A, SY, sT + 4, WS_Y, 0x200000)
    A(f"s_lshl_b32 s59, s{sW}, 10")
    A(f"s_add_u32 s59, s59, {YS}")
    A("s_mov_b32 m0, s59")
    A(f"buffer_load_dwordx4 v{vT0}, {srdn(SY)}, 0 offen lds")
    A("s_add_u32 s59, s59, 4096-16")
    A("s_mov_b32 m0, s59")
    A(f"buffer_load_dwordx4 v{vT0}, {srdn(SY)}, 0 offen offset:16 lds")
    A("s_add_u32 s59, s59, 4096+16")
    A("s_mov_b32 m0, s59")
    A(f"buffer_load_dwordx4 v{vT1}, {srdn(SY)}, 0 offen lds")
    tok_y = A.mark()
    srd(A, SST, sT + 4, WS_ST, WS_FLAG + 32768 - WS_ST)
    A(f"s_lshl_b32 s{sFLAG}, s{sC}, 10")
    A(f"s_add_u32 s{sFLAG}, s{sFLAG}, {hex(WS_FLAG - WS_ST)}")
    l = A.label("IDS")
    A(f"s_add_u32 s{sMODE}, s{sMODE}, 1")
    A(f"s_cmp_lg_u32 s{sW}, 0")
    A.raw(f"s_cbranch_scc1 {l}")
    A.begin_cond()
    A(f"s_lshl2_add_u32 s59, s{sJ}, s{sFLAG}")
    A(f"v_mov_b32 v{vPOLL}, s{sMODE}")
    A("s_mov_b64 exec, 1")
    A(f"buffer_store_dword v{vPOLL}, off, {srdn(SST)}, s59 offset:512 sc1")
    A("s_mov_b64 exec, -1")
    A.end_cond()
    A.raw(f"{l}:")
    srd(A, SWT, sT + 4, WS_W1P, WS_XC - WS_W1P)
    A(f"s_lshl1_add_u32 s59, s{sJ}, s{sNH}")
    A("s_lshl_b32 s58, s59, 15")
    A(f"s_lshl_b32 s57, s{sKH}, 14")
    A("s_add_u32 s58, s58, s57")
    A(f"s_mov_b32 s74, s58")
    A(f"s_add_u32 s75, s58, {hex(WS_W2P - WS_W1P)}")
    w12q = [wload(a(4 * k, 4), vL16, 74, k) for k in range(16)] + [wload(v(W2R + 4 * k, 4), vL16, 75, k) for k in range(16)]
    A(f"s_mul_i32 s67, s59, {86 * 1024}")
    A(f"s_mul_i32 s56, s{sKH}, {43 * 1024}")
    A("s_add_u32 s67, s67, s56")
    A(f"s_add_u32 s67, s67, {hex(WS_W4P - WS_W1P)}")
    A(f"s_mul_i32 s59, s{sC}, {XC_CL}")
    A(f"s_add_u32 s59, s59, {hex(WS_XC)}")
    srd(A, SXC, sT + 4, "s59", XC_CL)
    A(f"s_lshl_b32 s58, s{sC}, 16")
    A(f"s_add_u32 s59, s58, {hex(WS_HH)}")
    srd(A, SHH, sT + 4, "s59", 65536)
    A(f"s_add_u32 s59, s58, {hex(WS_X1)}")
    srd(A, SX1, sT + 4, "s59", 65536)
    A(f"s_mul_i32 s59, s{sC}, {G_CL}")
    A(f"s_add_u32 s59, s59, {hex(WS_G)}")
    srd(A, SG, sT + 4, "s59", G_CL)
    srd(A, SO, sT + 2, "s58", 65536)
    if trace:
        A(f"s_mov_b64 s[0:1], s[{sT + 4}:{sT + 5}]")
    A(f"s_mov_b32 s{sGC}, {fbits(C1)}")
    A(f"s_mov_b32 s{sGC + 1}, {fbits(C2)}")
    A(f"s_lshl_b32 s59, s{sW}, 3")
    A(f"s_add_u32 s59, s59, s{sJ}")
    for t in range(3):
        A(f"s_add_u32 s58, s59, {32 * t}")
        A(f"s_lshl_b32 s{sTILE + t}, s58, 11")
        A(f"s_lshl_b32 s{sW3 + t}, s58, 14")
        A(f"s_add_u32 s{sW3 + t}, s{sW3 + t}, {hex(WS_W3P - WS_W1P)}")
    A("s_cmp_lt_u32 s58, 86")
    A(f"s_cselect_b32 s{sTILE + 2}, s{sTILE + 2}, {hex(HUGE)}")
    A(f"s_cselect_b32 s{sW3 + 2}, s{sW3 + 2}, {hex(HUGE)}")
    A(f"v_min_u32 v{vPOLL}, 7, v1")
    A(f"v_lshlrev_b32 v{vPOLL}, 2, v{vPOLL}")
    A(f"v_mov_b32 v{vONE}, 1")
    A(f"s_lshl_b32 s59, s{sKH}, 12")
    A(f"s_lshl3_add_u32 s59, s{sNH}, s59")
    A(f"s_add_u32 s59, s59, {YS}")
    A(f"v_add_u32 v{vT0}, s59, v{vL16}")
    A(f"s_cmp_eq_u32 s{sJ}, 0")
    A("s_cselect_b32 s59, 2, 0")
    A(f"s_add_u32 s59, s59, s{sNH}")
    A(f"s_lshl_b32 s59, s59, 2")
    A(f"s_add_u32 s59, s59, {YS + 8192}")
    A(f"v_add_u32 v{vT1}, s59, v{vL16}")

    XF, QF, YR, YF, S1, S2, TT = 32, 56, 80, 92, 116, 120, 124

    def rowstats(src):
        for r in range(3):
            b = src + 8 * r
            t = TT + 4 * r
            A(f"v_pk_add_f32 {v(t, 2)}, {v(b, 2)}, {v(b + 2, 2)}")
            A(f"v_pk_mul_f32 {v(t + 2, 2)}, {v(b, 2)}, {v(b, 2)}")
        for k in (4, 6):
            for r in range(3):
                b = src + 8 * r
                t = TT + 4 * r
                A(f"v_pk_add_f32 {v(t, 2)}, {v(t, 2)}, {v(b + k, 2)}")
        for k in (2, 4, 6):
            for r in range(3):
                b = src + 8 * r
                t = TT + 4 * r
                A(f"v_pk_fma_f32 {v(t + 2, 2)}, {v(b + k, 2)}, {v(b + k, 2)}, {v(t + 2, 2)}")
        for r in range(3):
            A(f"v_add_f32 v{S1 + r}, v{TT + 4 * r}, v{TT + 4 * r + 1}")
            A(f"v_add_f32 v{S2 + r}, v{TT + 4 * r + 2}, v{TT + 4 * r + 3}")
        A(f"v_mov_b32 v{S1 + 3}, 0")
        A(f"v_mov_b32 v{S2 + 3}, 0")
        for S in (S1, S2):
            A(f"v_permlane32_swap_b32 v{S}, v{S + 2}")
            A(f"v_permlane32_swap_b32 v{S + 1}, v{S + 3}")
        for S in (S1, S2):
            A(f"v_add_f32 v{S}, v{S}, v{S + 2}")
            A(f"v_add_f32 v{S + 1}, v{S + 1}, v{S + 3}")
        for S in (S1, S2):
            A(f"v_permlane16_swap_b32 v{S}, v{S + 1}")
        for S in (S1, S2):
            A(f"v_add_f32 v{S}, v{S}, v{S + 1}")
        for sh in (8, 4, 2, 1):
            for S in (S1, S2):
                A(f"v_add_f32_dpp v{S}, v{S}, v{S} row_ror:{sh} row_mask:0xf bank_mask:0xf")
        A(f"v_mul_f32 v{S1}, {fbits(1.0 / 512)}, v{S1}")
        A(f"v_mul_f32 v{S1 + 1}, v{S1}, v{S1}")
        A(f"v_fma_f32 v{S2}, v{S2}, s{sT + 6}, -v{S1 + 1}")
        A(f"v_max_f32 v{S2}, 0, v{S2}")

    A(f"s_mov_b32 s{sT + 6}, {fbits(1.0 / 512)}")
    A.bg_start(w12q, opts.get("e12", 6))
    for r in range(3):
        for i in range(4):
            unpack(A, XF + 8 * r + 2 * i, XF + 8 * r + 2 * i + 1, XR + 4 * r + i)
    rowstats(XF)
    A(f"v_add_f32 v{S2}, {fbits(1e-5)}, v{S2}")
    A(f"v_rsq_f32 v{S2}, v{S2}")
    A(f"v_mul_f32 v{S1}, v{S1}, v{S2}")
    for r in range(3):
        A(f"v_readlane_b32 s{sSTAT + 2 * r}, v{S2}, {16 * r}")
        A(f"v_readlane_b32 s{sSTAT + 2 * r + 1}, v{S1}, {16 * r}")
    A.barrier(vm_tok=tok_y)
    stamp()
    for i in range(4):
        A(f"ds_read_b64 {v(YR + 2 * i, 2)}, v{vT0} offset:{1024 * i}")
    for i in range(4):
        A(f"ds_read_b32 v{YR + 8 + i}, v{vT1} offset:{1024 * i}")
    for r in range(3):
        sp = f"s[{sSTAT + 2 * r}:{sSTAT + 2 * r + 1}]"
        for i in range(4):
            A(f"v_pk_fma_f32 {v(QF + 8 * r + 2 * i, 2)}, {v(XF + 8 * r + 2 * i, 2)}, {sp}, {sp} op_sel:[0,0,1] op_sel_hi:[1,0,1] neg_lo:[0,0,1] neg_hi:[0,0,1]")
    for r in range(3):
        for i in range(4):
            unpack(A, YF + 8 * r + 2 * i, YF + 8 * r + 2 * i + 1, YR + 2 * i + r if r < 2 else YR + 8 + i)
    for r in range(3):
        for i in range(4):
            o = 8 * r + 2 * i
            A(f"v_pk_fma_f32 {v(XF + o, 2)}, {v(QF + o, 2)}, {v(YF + o, 2)}, {v(XF + o, 2)}")
    rowstats(XF)
    Z = 136
    A(f"v_add_f32 v{Z + 4}, {fbits(1e-5)}, v{S2}")
    A(f"v_rsq_f32 v{Z + 5}, v{Z + 4}")
    A(f"v_mov_b32 v{Z}, v{S1}")
    A(f"v_mul_f32 v{Z + 1}, v{Z + 4}, v{Z + 5}")
    A(f"v_mul_f32 v{Z + 6}, v{Z + 5}, v{Z + 5}")
    A(f"v_fmaak_f32 v{Z + 6}, v{Z + 6}, v{S2}, {fbits(1e-5)}")
    A(f"v_rsq_f32 v{Z + 7}, v{Z + 6}")
    A(f"v_mov_b32 v{Z + 3}, 0")
    A(f"v_mul_f32 v{Z + 2}, v{Z + 6}, v{Z + 7}")
    A(f"v_mul_f32 v{Z + 5}, v{Z + 5}, v{Z + 7}")
    A(f"v_mul_f32 v{Z + 4}, v{Z + 5}, v{S1}")
    for r in range(3):
        A(f"v_readlane_b32 s{sSTAT + 2 * r}, v{Z + 5}, {16 * r}")
        A(f"v_readlane_b32 s{sSTAT + 2 * r + 1}, v{Z + 4}, {16 * r}")
    for r in range(3):
        sp = f"s[{sSTAT + 2 * r}:{sSTAT + 2 * r + 1}]"
        for i in range(4):
            A(f"v_pk_fma_f32 {v(QF + 8 * r + 2 * i, 2)}, {v(XF + 8 * r + 2 * i, 2)}, {sp}, {sp} op_sel:[0,0,1] op_sel_hi:[1,0,1] neg_lo:[0,0,1] neg_hi:[0,0,1]")
    for r in range(3):
        for i in range(4):
            A(f"v_cvt_pk_bf16_f32 v{XR + 4 * r + i}, v{QF + 8 * r + 2 * i}, v{QF + 8 * r + 2 * i + 1}")
    A.bg_stop()
    A(f"s_lshl_b32 s59, s{sJ}, 3")
    A(f"s_lshl1_add_u32 s59, s{sW}, s59")
    A("s_lshl_b32 s57, s59, 4")
    A(f"s_lshl_b32 s56, s{sC}, 10")
    A("s_add_u32 s57, s57, s56")
    A("s_add_u32 s59, s59, 2")
    A("s_lshl_b32 s59, s59, 10")
    A(f"v_and_b32 v{vT2}, 47, v1")
    A(f"v_cmp_eq_u32 vcc, 0, v{vT2}")
    A(f"v_mov_b32 v{vT3}, {hex(HUGE)}")
    A(f"v_cndmask_b32 v{vT2}, v{vT3}, v1, vcc")
    stamp()
    poll(4)
    A(f"v_cmp_ne_u32 vcc, s{sMODE}, v{vT0}")
    A("s_cmp_eq_u64 vcc, 0")
    A(f"s_cselect_b32 s{sMODE}, 1, 0")
    if opts.get("safe"):
        A(f"s_mov_b32 s{sMODE}, 0")

    def st25(p):
        A(f"buffer_store_dwordx4 {v(XR, 4)}, v{vL16}, {srdn(SXC)}, s59 offen{p}")
        A(f"buffer_store_dwordx4 {v(XR + 4, 4)}, v{vL16}, {srdn(SXC)}, s59 offen offset:1024{p}")
        A(f"buffer_store_dwordx4 {v(XR + 8, 4)}, v{vL16}, {srdn(SXC)}, s45 offen{p}")
        A(f"buffer_store_dwordx4 {v(Z, 4)}, v{vT2}, {srdn(SST)}, s57 offen{p}")
    stores(st25)
    tok = A.mark()
    A(f"s_lshr_b32 s59, s{sJ}, 1")
    A("s_lshl_b32 s59, s59, 2")
    A("s_lshr_b32 s59, 0x4031, s59")
    A("s_and_b32 s59, s59, 15")
    A(f"s_lshl_b32 s58, s{sNH}, 5")
    A("s_add_u32 s59, s59, s58")
    A("s_lshl_b32 s59, s59, 10")
    A(f"s_lshl_b32 s58, s{sKH}, 9")
    A("s_add_u32 s59, s59, s58")
    A(f"v_lshrrev_b32 v{vT0}, 3, v1")
    A(f"v_lshlrev_b32 v{vT0}, 10, v{vT0}")
    A(f"v_add_u32 v{vT0}, s59, v{vT0}")
    A(f"v_and_b32 v{vT1}, 7, v1")
    A(f"v_lshrrev_b32 v{vT2}, 4, v1")
    A(f"v_xor_b32 v{vT1}, v{vT1}, v{vT2}")
    A(f"v_lshl_add_u32 v{vB0H}, v{vT1}, 4, v{vT0}")
    A(f"v_xor_b32 v{vB1H}, 64, v{vB0H}")
    A(f"v_and_b32 v{vT0}, 31, v1")
    A(f"v_lshrrev_b32 v{vT1}, 5, v1")
    A(f"v_bfe_u32 v{vT2}, v1, 1, 3")
    A(f"v_xor_b32 v{vT1}, v{vT1}, v{vT2}")
    A(f"v_lshlrev_b32 v{vT1}, 4, v{vT1}")
    A(f"v_lshl_add_u32 v{vT1}, v{vT0}, 7, v{vT1}")
    A(f"s_mul_i32 s58, s{sKH}, {8192 + 4096}")
    A(f"v_add_u32 v{vA0}, s58, v{vT1}")
    for k in (1, 2, 3):
        A(f"v_xor_b32 v{vA0 + k}, {32 * k}, v{vA0}")
    A(f"s_lshl_b32 s58, s{sW}, 12")
    A(f"s_add_u32 s58, s58, {RED}")
    A(f"v_add_u32 v{vRW}, s58, v{vL16}")
    A(f"v_xor_b32 v{vRR}, 8192, v{vRW}")
    A(f"v_lshrrev_b32 v{vT1}, 5, v1")
    A(f"v_lshlrev_b32 v{vT1}, 5, v{vT1}")
    A(f"v_lshl_add_u32 v{vT1}, v{vT0}, 10, v{vT1}")
    A(f"s_lshl_b32 s58, s{sKH}, 15")
    A(f"s_lshl_b32 s57, s{sJ}, 7")
    A("s_add_u32 s58, s58, s57")
    A(f"s_lshl_b32 s57, s{sNH}, 6")
    A("s_add_u32 s58, s58, s57")
    A(f"v_add_u32 v{vOUT}, s58, v{vT1}")
    signal(0, tok)
    stamp()
    poll(0)
    stamp()

    toks = []
    A(f"s_lshl_b32 s58, s{sW}, 12")
    for i in range(4):
        A(f"s_add_u32 s57, s58, {STG0 + 16384 * i}")
        A("s_mov_b32 m0, s57")
        for n in range(4):
            A(f"s_movk_i32 s56, {7168 * n + 128 * i}")
            A(f"buffer_load_dwordx4 v{vB1H if n & 1 else vB0H}, {srdn(SXC)}, s56 offen offset:{1024 * n} sc1 lds")
        toks.append(A.mark())
    XT, STT = TMP, TMP + 8
    A(f"buffer_load_dwordx4 {v(XT, 4)}, v{vOUT}, {srdn(SXC)}, 0 offen offset:2048 sc1")
    A(f"buffer_load_dwordx4 {v(XT + 4, 4)}, v{vOUT}, {srdn(SXC)}, 0 offen offset:2064 sc1")
    A(f"v_and_b32 v{vT0}, 31, v1")
    A(f"v_lshlrev_b32 v{vT0}, 4, v{vT0}")
    A(f"s_lshl_b32 s57, s{sC}, 10")
    A(f"s_lshl_b32 s56, s{sKH}, 9")
    A("s_add_u32 s57, s57, s56")
    A(f"buffer_load_dwordx4 {v(STT, 4)}, v{vT0}, {srdn(SST)}, s57 offen sc1")
    w3q = []
    for t in range(3):
        for k in range(16):
            w3q.append(wload(a(64 + 64 * t + 4 * k, 4), vL16, sW3 + t, k))
    w4q = [wload(w4reg(f), vL16, 67, f) for f in range(43)]
    n3a = opts.get("w3a", 20)
    A.bg_start(w3q[:n3a], 1, ("mfma",))

    def gemm32(nsteps_chunks, wreg, rd0, rd1, chunk_tok, extra=None):
        steps = [(ci, sp) for ci, ns in enumerate(nsteps_chunks) for sp in range(ns)]
        D = 4
        opened = set()

        def read(k):
            if k >= len(steps):
                return
            ci, sp = steps[k]
            if ci not in opened:
                opened.add(ci)
                A.barrier(vm_tok=chunk_tok(ci))
                if extra:
                    extra(ci)
            b = BF + 8 * (k % D)
            A(f"ds_read_b128 {v(b, 4)}, {rd0(ci, sp)}")
            A(f"ds_read_b128 {v(b + 4, 4)}, {rd1(ci, sp)}")
        lag = opts.get("lag", 2)
        nread = 0
        while nread < D and steps[nread][0] == 0:
            read(nread)
            nread += 1
        for k, (ci, sp) in enumerate(steps):
            b = BF + 8 * (k % D)
            c0 = "0" if k == 0 else v(ACC, 16)
            c1 = "0" if k == 0 else v(ACC + 16, 16)
            A(f"v_mfma_f32_32x32x16_bf16 {v(ACC, 16)}, {wreg(k)}, {v(b, 4)}, {c0}")
            A(f"v_mfma_f32_32x32x16_bf16 {v(ACC + 16, 16)}, {wreg(k)}, {v(b + 4, 4)}, {c1}")
            while nread < len(steps) and nread <= k + D:
                if steps[nread][0] not in opened and nread - k - 1 > lag:
                    break
                read(nread)
                nread += 1

    def reduce_pair():
        for q in range(4):
            A(f"ds_write_b128 v{vRW}, {v(ACC + 16 + 4 * q, 4)} offset:{1024 * q}")
        A.barrier()
        for q in range(4):
            A(f"ds_read_b128 {v(ACC + 16 + 4 * q, 4)}, v{vRR} offset:{1024 * q}")
        for q in range(8):
            A(f"v_pk_add_f32 {v(ACC + 2 * q, 2)}, {v(ACC + 2 * q, 2)}, {v(ACC + 16 + 2 * q, 2)}")

    for k in range(4):
        A(f"v_xor_b32 v{vB0 + k if k < 2 else vT2 + k - 2}, 4096, v{vA0 + k}")
    sent = [vB0, vB1, vT2, vT3]
    gemm32([4, 4, 4, 4], lambda st: a(4 * st, 4),
           lambda ci, sp: f"v{vA0 + sp} offset:{16384 * ci}",
           lambda ci, sp: f"v{sent[sp]} offset:{16384 * ci}",
           lambda ci: toks[ci])
    A.bg_stop()
    stamp()
    reduce_pair()
    PK = BF + 16
    A("\n".join(zipped([gelu_pair(ACC + 2 * q, BF + 2 * q, PK + q) for q in range(8)])))
    A(f"s_lshl1_add_u32 s45, s{sJ}, s{sNH}")
    A("s_lshl_b32 s45, s45, 12")
    A(f"s_lshl_b32 s58, s{sKH}, 10")
    A("s_add_u32 s45, s45, s58")

    def st3(p):
        A(f"buffer_store_dwordx4 {v(PK, 4)}, v{vL16}, {srdn(SHH)}, s45 offen{p}")
        A(f"buffer_store_dwordx4 {v(PK + 4, 4)}, v{vL16}, {srdn(SHH)}, s45 offen offset:2048{p}")
    stores(st3)
    tok = A.mark()
    A(f"s_mul_i32 s58, s{sKH}, {32768 + 1024}")
    A(f"s_add_u32 s58, s58, {STG1}")
    A(f"v_add_u32 v{vB0}, s58, v{vL16}")
    A(f"v_xor_b32 v{vB1}, 1024, v{vB0}")
    signal(1, tok)
    stamp()
    poll(1)
    stamp()

    toks = []
    A(f"s_lshl_b32 s58, s{sKH}, 15")
    A(f"s_lshl_b32 s57, s{sNH}, 12")
    A("s_add_u32 s58, s58, s57")
    for i in range(4):
        A(f"s_add_u32 s57, s58, {STG1}")
        A("s_mov_b32 m0, s57")
        for n in range(4):
            A(f"buffer_load_dwordx4 v{vL16}, {srdn(SHH)}, s58 offen offset:{1024 * n} sc1 lds")
        if i < 3:
            A("s_add_u32 s58, s58, 8192")
        toks.append(A.mark())
    A.bg_start(w3q[n3a:], 1, ("mfma",))
    gemm32([4, 4, 4, 4], lambda st: v(W2R + 4 * st, 4),
           lambda ci, sp: f"v{vB0} offset:{2048 * (4 * ci + sp)}",
           lambda ci, sp: f"v{vB1} offset:{2048 * (4 * ci + sp)}",
           lambda ci: toks[ci])
    A.bg_stop()
    stamp()
    reduce_pair()
    XB = ACC + 16
    for q in range(8):
        unpack(A, XB + 2 * q, XB + 2 * q + 1, XT + q)
    for q in range(8):
        A(f"v_pk_mul_f32 {v(XB + 2 * q, 2)}, {v(XB + 2 * q, 2)}, {v(STT + 2, 2)} op_sel_hi:[1,0]")
    for q in range(8):
        A(f"v_pk_add_f32 {v(ACC + 2 * q, 2)}, {v(ACC + 2 * q, 2)}, {v(XB + 2 * q, 2)}")
    for q in range(8):
        A(f"v_cvt_pk_bf16_f32 v{PK + q}, v{ACC + 2 * q}, v{ACC + 2 * q + 1}")
    for q in range(8):
        unpack(A, ACC + 2 * q, ACC + 2 * q + 1, PK + q)
    A(f"v_pk_add_f32 {v(BF, 2)}, {v(ACC, 2)}, {v(ACC + 2, 2)}")
    A(f"v_pk_mul_f32 {v(BF + 2, 2)}, {v(ACC, 2)}, {v(ACC, 2)}")
    for q in range(1, 8):
        if q > 1:
            A(f"v_pk_add_f32 {v(BF, 2)}, {v(BF, 2)}, {v(ACC + 2 * q, 2)}")
        A(f"v_pk_fma_f32 {v(BF + 2, 2)}, {v(ACC + 2 * q, 2)}, {v(ACC + 2 * q, 2)}, {v(BF + 2, 2)}")
    A(f"v_add_f32 v{BF}, v{BF}, v{BF + 1}")
    A(f"v_add_f32 v{BF + 2}, v{BF + 2}, v{BF + 3}")
    A(f"v_lshlrev_b32 v{vT0}, 2, v1")
    A(f"v_permlane32_swap_b32 v{BF}, v{BF + 2}")
    A(f"v_add_f32 v{BF}, v{BF}, v{BF + 2}")
    A(f"s_lshr_b32 s57, s45, 3")
    A(f"s_lshl_b32 s56, s{sKH}, 7")
    A("s_add_u32 s57, s57, s56")
    A(f"s_lshl_b32 s56, s{sC}, 13")
    A(f"s_add_u32 s56, s56, {hex(WS_ST2 - WS_ST)}")
    A("s_add_u32 s57, s57, s56")

    def st4(p):
        A(f"buffer_store_dwordx4 {v(PK, 4)}, v{vL16}, {srdn(SX1)}, s45 offen{p}")
        A(f"buffer_store_dwordx4 {v(PK + 4, 4)}, v{vL16}, {srdn(SX1)}, s45 offen offset:2048{p}")
        A(f"buffer_store_dword v{BF}, v{vT0}, {srdn(SST)}, s57 offen{p}")
    stores(st4)
    tok = A.mark()
    for q in range(8):
        A(f"v_pk_fma_f32 {v(XB + 2 * q, 2)}, {v(XB + 2 * q, 2)}, {v(STT, 2)}, {v(STT, 2)} op_sel:[0,1,0] op_sel_hi:[1,1,0]")
    for q in range(8):
        A(f"v_pk_add_f32 {v(RES + 2 * q, 2)}, {v(ACC + 2 * q, 2)}, {v(XB + 2 * q, 2)}")
    A(f"v_and_b32 v{vT1}, 15, v1")
    A(f"v_lshrrev_b32 v{vT2}, 4, v1")
    A(f"v_lshrrev_b32 v{vT3}, 1, v{vT2}")
    A(f"v_lshlrev_b32 v{vA0}, 11, v{vT3}")
    A(f"v_lshlrev_b32 v{vA1}, 9, v{vT3}")
    A(f"v_and_b32 v{vT3}, 1, v{vT2}")
    A(f"v_lshl_add_u32 v{vA0}, v{vT3}, 9, v{vA0}")
    A(f"v_lshl_add_u32 v{vA0}, v{vT1}, 4, v{vA0}")
    A(f"v_lshl_add_u32 v{vA1}, v{vT3}, 3, v{vA1}")
    A(f"v_lshl_add_u32 v{vA1}, v{vT1}, 4, v{vA1}")
    A(f"v_lshlrev_b32 v{vA2}, 11, v{vT2}")
    A(f"v_lshl_add_u32 v{vA2}, v{vT1}, 2, v{vA2}")
    A(f"s_lshl_b32 s57, s{sKH}, 8")
    A(f"s_lshl_b32 s55, s{sNH}, 6")
    A("s_add_u32 s57, s57, s55")
    A("s_add_u32 s55, s57, s56")
    A(f"v_lshlrev_b32 v{vA3}, 3, v{vT1}")
    A(f"v_add_u32 v{vA3}, {ST3}, v{vA3}")
    signal(2, tok)
    stamp()
    CS = TMP
    ONES = BF + 4
    for k in range(4):
        A(f"v_mov_b32 v{ONES + k}, 0x3f803f80")
    for S in range(16):
        for t in range(3):
            c = "0" if S == 0 else v(CS + 4 * t, 4)
            A(f"v_mfma_f32_16x16x32_bf16 {v(CS + 4 * t, 4)}, {a(64 + 64 * t + 4 * S, 4)}, {v(ONES, 4)}, {c}")
    poll(2)
    stamp()

    toks = []
    A(f"s_lshl_b32 s58, s{sW}, 12")
    for i in range(4):
        A("s_mov_b32 m0, s58")
        for n in range(4):
            A(f"buffer_load_dwordx4 v{vL16}, {srdn(SX1)}, s58 offen offset:{1024 * n} sc1 lds")
        if i < 3:
            A("s_add_u32 s58, s58, 16384")
        toks.append(A.mark())
    SP = TMP + 12
    for z in range(4):
        for st in range(2):
            A(f"buffer_load_dword v{SP + 2 * z + st}, v{vA2}, {srdn(SST)}, s55 offen offset:{512 * z + 128 * st} sc1")
    A.bg_start(w4q, 4, ("mfma",))
    RS = TMP + 20

    def p5_stats():
        A(f"v_pk_add_f32 {v(SP, 2)}, {v(SP, 2)}, {v(SP + 2, 2)}")
        A(f"v_pk_add_f32 {v(SP + 4, 2)}, {v(SP + 4, 2)}, {v(SP + 6, 2)}")
        A(f"v_pk_add_f32 {v(SP, 2)}, {v(SP, 2)}, {v(SP + 4, 2)}")
        for swap in ("v_permlane16_swap_b32", "v_permlane32_swap_b32"):
            A(f"v_mov_b32 v{SP + 2}, v{SP}")
            A(f"v_mov_b32 v{SP + 3}, v{SP + 1}")
            A(f"{swap} v{SP}, v{SP + 2}")
            A(f"{swap} v{SP + 1}, v{SP + 3}")
            A(f"v_add_f32 v{SP}, v{SP}, v{SP + 2}")
            A(f"v_add_f32 v{SP + 1}, v{SP + 1}, v{SP + 3}")
        A(f"v_mul_f32 v{SP}, {fbits(1.0 / 512)}, v{SP}")
        A(f"v_mul_f32 v{SP + 2}, v{SP}, v{SP}")
        A(f"v_fma_f32 v{SP + 1}, v{SP + 1}, s{sT + 6}, -v{SP + 2}")
        A(f"v_max_f32 v{SP + 1}, 0, v{SP + 1}")
        A(f"v_add_f32 v{SP + 1}, {fbits(1e-5)}, v{SP + 1}")
        A(f"v_rsq_f32 v{SP + 2}, v{SP + 1}")
        A(f"s_lshl_b32 s57, s{sW}, 7")
        A(f"v_add_u32 v{SP + 4}, s57, v{vA3}")
        A(f"v_mul_f32 v{SP + 3}, v{SP + 2}, -v{SP}")
        A("s_mov_b64 exec, 0xffff")
        A(f"ds_write_b64 v{SP + 4}, {v(SP + 2, 2)}")
        A("s_mov_b64 exec, -1")

    def rd(S):
        return [f"ds_read_b128 {v(BF + 16 * (S & 1) + 4 * u, 4)}, v{vA0} offset:{4096 * S + 1024 * (u >> 1) + 256 * (u & 1)}" for u in range(4)]
    A.barrier(vm_tok=toks[0])
    A("\n".join(rd(0)))
    for S in range(16):
        mf = []
        for u in range(4):
            for t in range(3):
                d = v(ACC + 16 * t + 4 * u, 4)
                mf.append(f"v_mfma_f32_16x16x32_bf16 {d}, {a(64 + 64 * t + 4 * S, 4)}, {v(BF + 16 * (S & 1) + 4 * u, 4)}, {'0' if S == 0 else d}")
        if S % 4 == 3 and S < 15:
            A("\n".join(mf[:4]))
            if S == 11:
                p5_stats()
            A.barrier(vm_tok=toks[S // 4 + 1], lg=(S == 11))
            A("\n".join(interleave(mf[4:], rd(S + 1), ratio=1)))
            if S == 11:
                for u in range(4):
                    A(f"ds_read_b64 {v(RS + 2 * u, 2)}, v{vA3} offset:{128 * u}")
        else:
            A("\n".join(interleave(mf, rd(S + 1) if S < 15 else [], ratio=1)))
    A.bg_stop()
    stamp()
    for t in range(3):
        seqs = []
        for u in range(4):
            for hh in range(2):
                x = ACC + 16 * t + 4 * u + 2 * hh
                tq = BF + 4 * u + 2 * hh
                rs = v(RS + 2 * u, 2)
                seqs.append([
                    f"v_pk_mul_f32 {v(x, 2)}, {v(x, 2)}, {rs} op_sel_hi:[1,0]",
                    f"v_pk_fma_f32 {v(x, 2)}, {v(CS + 4 * t + 2 * hh, 2)}, {rs}, {v(x, 2)} op_sel:[0,1,0] op_sel_hi:[1,1,1]",
                ] + gelu_pair(x, tq, BF + 16 + 8 * (t & 1) + 2 * u + hh))
        A("\n".join(zipped(seqs)))

        def st5(p):
            for u in range(4):
                A(f"buffer_store_dwordx2 {v(BF + 16 + 8 * (t & 1) + 2 * u, 2)}, v{vA1}, {srdn(SG)}, s{sTILE + t} offen offset:{1024 * (u >> 1) + 256 * (u & 1)}{p}")
        stores(st5)
    tok = A.mark()
    A(f"s_mul_i32 s58, s{sKH}, {8192 + 1024}")
    A(f"v_add_u32 v{vB0}, s58, v{vL16}")
    A(f"v_xor_b32 v{vB1}, 1024, v{vB0}")
    A(f"v_add_u32 v{vB0H}, 0x10000, v{vB0}")
    A(f"v_add_u32 v{vB1H}, 0x10000, v{vB1}")
    signal(3, tok)
    stamp()
    poll(3)
    stamp()

    toks = []
    A(f"s_mul_i32 s58, s{sKH}, {43 * 2048}")
    A(f"s_lshl_b32 s57, s{sNH}, 12")
    A("s_add_u32 s58, s58, s57")
    A(f"s_lshl_b32 s55, s{sW}, 12")

    def gdma(i):
        A(f"s_add_u32 s57, s55, {16384 * (i % 8)}")
        A("s_mov_b32 m0, s57")
        for n in range(4):
            A(f"buffer_load_dwordx4 v{vL16}, {srdn(SG)}, s58 offen offset:{1024 * n} sc1 lds")
        A("s_add_u32 s58, s58, 8192")
        toks.append(A.mark())
    for i in range(8):
        gdma(i)

    def p6_extra(ci):
        if 1 <= ci <= 3:
            gdma(7 + ci)
    gemm32([4] * 10 + [3], w4reg,
           lambda ci, sp: f"v{vB0H if (ci % 8) >= 4 else vB0} offset:{16384 * (ci % 4) + 2048 * sp}",
           lambda ci, sp: f"v{vB1H if (ci % 8) >= 4 else vB1} offset:{16384 * (ci % 4) + 2048 * sp}",
           lambda ci: toks[ci], p6_extra)
    stamp()
    reduce_pair()
    for q in range(8):
        A(f"v_pk_add_f32 {v(ACC + 2 * q, 2)}, {v(ACC + 2 * q, 2)}, {v(RES + 2 * q, 2)}")
    for q in range(8):
        A(f"v_cvt_pk_bf16_f32 v{PK + q}, v{ACC + 2 * q}, v{ACC + 2 * q + 1}")
    A(f"buffer_store_dwordx4 {v(PK, 4)}, v{vOUT}, {srdn(SO)}, 0 offen")
    A(f"buffer_store_dwordx4 {v(PK + 4, 4)}, v{vOUT}, {srdn(SO)}, 0 offen offset:16")
    if trace:
        A.wait_vm()
        stamp()
        stamp(True)
        A(f"s_mov_b32 s{sTR + ntr[0] - 1}, s100")
        assert sTR + ntr[0] <= 100
        srd(A, SX, 0, WS_TRACE, 0x100000)
        A("s_lshl_b32 s58, s2, 2")
        A(f"s_add_u32 s58, s58, s{sW}")
        A("s_lshl_b32 s58, s58, 7")
        A("s_mov_b64 exec, 1")
        for k in range(ntr[0]):
            A(f"v_mov_b32 v{vT0}, s{sTR + k}")
            A(f"buffer_store_dword v{vT0}, off, {srdn(SX)}, s58 offset:{4 * k}")
        A(f"v_mov_b32 v{vT0}, s{sMODE}")
        A(f"buffer_store_dword v{vT0}, off, {srdn(SX)}, s58 offset:124")
    A("K3_END:")
    return A, 512, 256
```

```python
from common import *


def gen_ka(opts):
    A = Asm()
    T = Tracer(A, opts.get("trace"))
    A("s_cmp_ge_u32 s2, 256")
    A("s_cbranch_scc1 KA_RELAY")
    T("rstart", True)
    T("start")
    A(f"s_load_dwordx8 s[4:11], s[0:1], {A_Q}")
    A(f"s_load_dwordx2 s[24:25], s[0:1], {A_SSMK}")
    A(f"s_load_dwordx2 s[26:27], s[0:1], {A_WS}")
    A("s_and_b32 s28, s2, 7")
    A("s_lshr_b32 s29, s2, 3")
    A("v_and_b32 v1, 31, v0")
    A("v_lshrrev_b32 v2, 5, v0")
    A("s_lshl_b32 s30, s29, 6")
    A("v_lshl_add_u32 v3, v2, 3, s30")
    A("s_lshl_b32 s31, s28, 7")
    A("v_lshl_add_u32 v4, v1, 2, s31")
    A("v_lshl_add_u32 v5, v3, 10, v4")
    A("v_subrev_u32 v6, 0xc00, v5")
    A("v_cmp_eq_u32 vcc, 0, v3")
    A("v_mov_b32 v7, 0x80000000")
    A("v_cndmask_b32 v6, v6, v7, vcc")
    A("v_lshlrev_b32 v7, 2, v4")
    A("s_movk_i32 s33, 0x1000")
    A("v_lshrrev_b32 v8, 6, v0")
    A("v_and_b32 v9, 63, v0")
    A("s_lshl_b32 s34, s28, 8")
    A("s_lshl3_add_u32 s34, s29, s34")
    A("v_lshl_add_u32 v8, v8, 1, s34")
    A("v_lshlrev_b32 v104, 10, v8")
    A("v_lshl_add_u32 v104, v9, 4, v104")
    SK, SV, SS, SQ, SW, SM, SF_ = 12, 16, 20, 36, 40, 44, 48
    srd(A, SK, 6, 0, 0x200000)
    K0, V0, S0, X0 = 10, 22, 30, 108
    for i in range(3):
        A(f"buffer_load_dword v{K0 + i}, v6, {srdn(SK)}, 0 offen offset:{1024 * i}")
    for i in range(8):
        A(f"buffer_load_dword v{K0 + 3 + i}, v5, {srdn(SK)}, {'0' if i < 4 else 's33'} offen offset:{1024 * (i % 4)}")
    srd(A, SS, 10, 0, 4096)
    A(f"buffer_load_dwordx4 v[{S0}:{S0 + 3}], v7, {srdn(SS)}, 0 offen")
    srd(A, SV, 8, 0, 0x200000)
    for i in range(8):
        A(f"buffer_load_dword v{V0 + i}, v5, {srdn(SV)}, {'0' if i < 4 else 's33'} offen offset:{1024 * (i % 4)}")
    srd(A, SQ, 4, 0, 0x200000)
    A(f"buffer_load_dwordx4 {v(X0, 4)}, v104, {srdn(SQ)}, 0 offen")
    A(f"buffer_load_dwordx4 {v(X0 + 4, 4)}, v104, {srdn(SQ)}, 0 offen offset:1024")
    if not opts.get("nowarm"):
        A("s_lshl_b32 s35, s28, 5")
        A("s_add_u32 s35, s35, s29")
        A("s_lshl_b32 s35, s35, 13")
        srd(A, SF_, 24, "s35", 8192)
        A("v_lshlrev_b32 v105, 7, v0")
        A(f"buffer_load_dword v106, v105, {srdn(SF_)}, 0 offen")
        A("s_getpc_b64 s[52:53]")
        A.raw("KA_PC:")
        A("s_add_u32 s52, s52, kb_kernel-KA_PC")
        A("s_addc_u32 s53, s53, 0")
        A("s_cmp_eq_u32 s29, 0")
        A("s_cselect_b32 s54, KB_END-kb_kernel, 0")
        A(f"s_mov_b32 s55, {hex(SRD3)}")
        A("buffer_load_dword v107, v105, s[52:55], 0 offen")
    srd(A, SW, 26, WS_CL, 32 * CL_SZ)
    srd(A, SM, 26, WS_SM, SM_SZ)
    A("s_lshl_b32 s35, s2, 8")
    A(f"s_add_u32 s35, s35, {hex(SM_FLAG)}")
    A(f"s_cmp_lt_u32 s35, {hex(SM_ZEND)}")
    A(f"s_cselect_b32 s35, s35, {hex(HUGE)}")
    A("v_lshlrev_b32 v116, 2, v0")
    A("v_cmp_gt_u32 vcc, 64, v0")
    A(f"v_mov_b32 v117, {hex(HUGE)}")
    A("v_cndmask_b32 v116, v117, v116, vcc")
    A("v_mov_b32 v118, 0")
    A(f"buffer_store_dword v118, v116, {srdn(SM)}, s35 offen")
    A("v_lshrrev_b32 v116, 5, v4")
    A(f"v_mul_u32_u24 v116, {CL_SZ}, v116")
    A("v_and_b32 v118, 31, v4")
    A("v_lshl_add_u32 v116, v118, 11, v116")
    A("v_sub_u32 v118, 2040, v3")
    A("v_lshl_add_u32 v116, v118, 1, v116")
    A("v_and_b32 v119, 47, v9")
    A("v_cmp_eq_u32 vcc, 0, v119")
    A("v_lshrrev_b32 v119, 1, v9")
    A("v_lshl_add_u32 v119, v8, 3, v119")
    A("v_cndmask_b32 v119, v117, v119, vcc")
    A(f"s_mov_b32 s56, {fbits(1.0 / 512)}")
    A(f"s_mov_b32 s57, {hex(SM_XST)}")
    T("issued")
    KF, VF, SF, O, P0, P1 = 34, 56, 72, 80, 96, 100
    for i in range(11):
        unpack(A, KF + 2 * i, KF + 2 * i + 1, K0 + i)
    for j in range(4):
        for c in range(2):
            src = S0 + 2 * c + (j >> 1)
            if j & 1:
                A(f"v_and_b32 v{SF + 2 * j + c}, 0xffff0000, v{src}")
            else:
                A(f"v_lshlrev_b32 v{SF + 2 * j + c}, 16, v{src}")
    for t in range(8):
        A(f"v_pk_mul_f32 {v(O + 2 * t, 2)}, {v(KF + 2 * t, 2)}, {v(SF + 6, 2)}")
    for j in (2, 1, 0):
        for t in range(8):
            A(f"v_pk_fma_f32 {v(O + 2 * t, 2)}, {v(KF + 2 * (t + 3 - j), 2)}, {v(SF + 2 * j, 2)}, {v(O + 2 * t, 2)}")
    for t in range(8):
        unpack(A, VF + 2 * t, VF + 2 * t + 1, V0 + t)
    for t in range(8):
        A(f"v_pk_mul_f32 {v(O + 2 * t, 2)}, {v(O + 2 * t, 2)}, {v(VF + 2 * t, 2)}")
    for i in range(4):
        A(f"v_cvt_pk_bf16_f32 v{P0 + i}, v{O + 2 * (7 - 2 * i)}, v{O + 2 * (6 - 2 * i)}")
    A(f"buffer_store_dwordx4 {v(P0, 4)}, v116, {srdn(SW)}, 0 offen")
    for i in range(4):
        A(f"v_cvt_pk_bf16_f32 v{P1 + i}, v{O + 2 * (7 - 2 * i) + 1}, v{O + 2 * (6 - 2 * i) + 1}")
    A(f"buffer_store_dwordx4 {v(P1, 4)}, v116, {srdn(SW)}, s33 offen")
    T("kv")
    XF, S1, S2, TT = 34, 52, 56, 60
    for r in range(2):
        for i in range(4):
            unpack(A, XF + 8 * r + 2 * i, XF + 8 * r + 2 * i + 1, X0 + 4 * r + i)
    rowstats(A, 2, XF, S1, S2, TT, 56)
    A(f"v_add_f32 v{S2}, {fbits(1e-5)}, v{S2}")
    A(f"v_rsq_f32 v{S2}, v{S2}")
    A(f"v_mul_f32 v{S2 + 1}, v{S1}, v{S2}")
    A(f"buffer_store_dwordx2 {v(S2, 2)}, v119, {srdn(SM)}, s57 offen")
    T("xst")
    T.finish(26, 1, 60, 1)
    A("s_endpgm")
    names_a = T.names
    A("KA_RELAY:")
    B = Asm()
    T = Tracer(B, opts.get("trace"))
    B("s_cmp_ge_u32 s2, 512")
    B("s_cbranch_scc1 KA_END")
    T("rstart", True)
    T("start")
    B(f"s_load_dwordx8 s[4:11], s[0:1], {A_W1}")
    B(f"s_load_dwordx2 s[26:27], s[0:1], {A_WS}")
    B("v_lshrrev_b32 v2, 6, v0")
    B("v_and_b32 v1, 63, v0")
    B("v_readfirstlane_b32 s30, v2")
    B("s_sub_u32 s28, s2, 256")
    B("s_lshl_b32 s28, s28, 2")
    B("s_add_u32 s28, s28, s30")
    B("s_mov_b32 s60, 0x05040100")
    B("s_mov_b32 s61, 0x07060302")
    B("v_and_b32 v3, 31, v1")
    B("v_lshrrev_b32 v4, 5, v1")
    B("v_and_b32 v5, 15, v1")
    B("v_lshrrev_b32 v6, 4, v1")
    B("v_lshlrev_b32 v7, 1, v3")
    B("v_and_b32 v7, 31, v7")
    B("v_bfe_u32 v8, v7, 2, 2")
    B("v_lshlrev_b32 v8, 3, v8")
    B("v_bfe_u32 v9, v7, 4, 1")
    B("v_lshl_add_u32 v8, v9, 2, v8")
    B("v_and_b32 v9, 3, v7")
    B("v_add_u32 v8, v8, v9")
    B("v_lshl_add_u32 v8, v4, 5, v8")
    B("v_lshlrev_b32 v8, 4, v8")
    B("v_lshrrev_b32 v9, 4, v3")
    B("v_lshlrev_b32 v10, 1, v5")
    B("v_and_b32 v10, 15, v10")
    B("v_lshl_add_u32 v10, v6, 4, v10")
    B("v_lshlrev_b32 v10, 4, v10")
    B("v_lshrrev_b32 v11, 3, v5")
    B("s_mov_b32 s15, 0x20000")
    B("s_mov_b32 s23, 0x20000")
    B.wait_lg()
    for it in range(2):
        R = 20 + 24 * it
        L = f"KAR{it}"
        d = 12 if it == 0 else 20
        va, vd = 12 + 2 * it, 13 + 2 * it
        if it == 0:
            B("s_cmp_ge_u32 s28, 512")
            B(f"s_cbranch_scc1 {L}_W4")
            B("s_cmp_ge_u32 s28, 256")
            B(f"s_cselect_b32 s{d}, s6, s4")
            B(f"s_cselect_b32 s{d + 1}, s7, s5")
            B("s_cselect_b32 s41, 1, 0")
            B(f"s_mov_b32 s{d + 2}, 0x80000")
            B("s_and_b32 s42, s28, 7")
            B("s_bfe_u32 s43, s28, 0x50003")
            B("s_lshr_b32 s44, s43, 1")
            B("s_lshl_b32 s44, s44, 5")
            B("s_and_b32 s45, s43, 1")
            B("s_lshl_b32 s45, s45, 3")
            B("s_add_u32 s44, s44, s45")
            B("s_lshl_b32 s45, s43, 4")
            B("s_cmp_eq_u32 s41, 1")
            B("s_cselect_b32 s44, s44, s45")
            B("s_add_u32 s45, s41, 3")
            B(f"v_lshlrev_b32 v{va}, s45, v4")
            B(f"v_add_u32 v{va}, s44, v{va}")
            B(f"v_lshlrev_b32 v{va}, 10, v{va}")
            B("s_lshl_b32 s45, s42, 7")
            B(f"v_lshl_add_u32 v{vd}, v3, 2, s45")
            B(f"v_add_u32 v{va}, v{va}, v{vd}")
            B("s_lshl_b32 s45, s42, 16")
            B("s_lshl_b32 s46, s43, 10")
            B("s_add_u32 s45, s45, s46")
            B("s_lshl_b32 s46, s41, 19")
            B("s_add_u32 s45, s45, s46")
            B(f"v_lshl_add_u32 v{vd}, v9, 15, v8")
            B(f"v_add_u32 v{vd}, s45, v{vd}")
            B("s_movk_i32 s40, 0x400")
            B(f"s_branch {L}_GO")
        else:
            B("s_add_u32 s28, s28, 1024")
            B("s_cmp_ge_u32 s28, 1200")
            B(f"s_cbranch_scc1 {L}_W3")
        B(f"{L}_W4:")
        B("s_sub_u32 s41, s28, 512")
        B("s_and_b32 s42, s41, 7")
        B("s_lshr_b32 s43, s41, 3")
        B(f"s_mov_b32 s{d}, s10")
        B(f"s_mov_b32 s{d + 1}, s11")
        B(f"s_mov_b32 s{d + 2}, {1376 * 1024}")
        B("s_lshl_b32 s44, s43, 4")
        B(f"v_lshl_add_u32 v{va}, v4, 3, s44")
        B(f"v_lshlrev_b32 v{va}, 10, v{va}")
        B("s_lshl_b32 s45, s42, 7")
        B(f"v_lshl_add_u32 v{vd}, v3, 2, s45")
        B(f"v_add_u32 v{va}, v{va}, v{vd}")
        B(f"s_mul_i32 s45, s42, {2 * 86 * 1024}")
        B("s_lshl_b32 s46, s43, 10")
        B("s_add_u32 s45, s45, s46")
        B(f"s_add_u32 s45, s45, {WS_W4P - WS_W1P}")
        B(f"v_mul_u32_u24 v{vd}, {86 * 1024}, v9")
        B(f"v_add3_u32 v{vd}, v{vd}, v8, s45")
        B("s_movk_i32 s40, 0x400")
        if it == 1:
            B(f"s_branch {L}_GO")
            B(f"{L}_W3:")
            B("s_sub_u32 s41, s28, 1200")
            B("s_and_b32 s43, s41, 15")
            B("s_lshr_b32 s42, s41, 4")
            B(f"s_mov_b32 s{d}, s8")
            B(f"s_mov_b32 s{d + 1}, s9")
            B("s_cmp_lt_u32 s42, 43")
            B(f"s_cselect_b32 s{d + 2}, {512 * 2752}, 0")
            B(f"s_cselect_b32 s48, {WS_W3P - WS_W1P}, {hex(HUGE)}")
            B(f"v_and_b32 v{va}, 1, v6")
            B(f"v_lshlrev_b32 v{va}, 4, v{va}")
            B(f"v_lshrrev_b32 v{vd}, 1, v6")
            B(f"v_lshl_add_u32 v{va}, v{vd}, 3, v{va}")
            B("s_lshl_b32 s44, s43, 5")
            B(f"v_add_u32 v{va}, s44, v{va}")
            B(f"v_mul_u32_u24 v{va}, 2752, v{va}")
            B("s_lshl_b32 s45, s42, 6")
            B(f"v_lshl_add_u32 v{vd}, v5, 2, s45")
            B(f"v_add_u32 v{va}, v{va}, v{vd}")
            B("s_lshl_b32 s45, s42, 15")
            B("s_lshl_b32 s46, s43, 10")
            B("s_add_u32 s45, s45, s46")
            B("s_add_u32 s45, s45, s48")
            B(f"v_lshl_add_u32 v{vd}, v11, 14, v10")
            B(f"v_add_u32 v{vd}, s45, v{vd}")
            B("s_movk_i32 s40, 2752")
        B(f"{L}_GO:")
        B("s_mov_b32 s47, 0")
        for i in range(8):
            B(f"buffer_load_dword v{R + i}, v{va}, {srdn(d)}, s47 offen")
            if i < 7:
                B("s_add_u32 s47, s47, s40")
    srd(B, 16, 26, WS_W1P, WS_XC - WS_W1P)
    for it in range(2):
        R = 20 + 24 * it
        vd = 13 + 2 * it
        for i in range(4):
            B(f"v_perm_b32 v{R + 8 + i}, v{R + 2 * i + 1}, v{R + 2 * i}, s60")
            B(f"v_perm_b32 v{R + 12 + i}, v{R + 2 * i + 1}, v{R + 2 * i}, s61")
        B(f"buffer_store_dwordx4 {v(R + 8, 4)}, v{vd}, s[16:19], 0 offen")
        B(f"buffer_store_dwordx4 {v(R + 12, 4)}, v{vd}, s[16:19], 0 offen offset:16")
    T.finish(26, 1, 60, 1)
    B("KA_END:")
    A.ins += B.ins
    A.trace_names = names_a
    return A, 120, 120
```

```python
from common import *

STG0, STG1 = 0, 65536
RED = 131072
ST3 = RED + 16384
KB_LDS = ST3 + 1024
YS = STG1
CV_F = 0
F_COPY = 4224
F_CH = 2 * F_COPY
CV_U = 2 * F_CH
U_CH = 6144
CV_X = CV_U + 2 * U_CH

C1 = -2.0 * 0.7978845608028654 * 1.4426950408889634
C2 = C1 * 0.044715

sC, sJ, sW, sKH, sNH = 3, 4, 5, 6, 7
SX, SY, SWT, SXC, SCL, SFI, SKV, SST, SO = 8, 12, 16, 20, 24, 28, 32, 36, 40
sMODE = 44
sHALO = 45
sGC = 46
sT = 48
sINV = 54
sTILE = 60
sW3 = 63
sFLAG = 66
sW4 = 67
sSTAT = 68
sW1, sW2 = 74, 75
sG, sI, sD, sYO = 76, 77, 78, 79

vL16 = 2
vPOLL = 3
vB0, vB1, vB0H, vB1H = 4, 5, 6, 7
vA0, vA1, vA2, vA3 = 8, 9, 10, 11
vRW, vRR = 12, 13
vT0, vT1, vT2, vT3 = 14, 15, 16, 17
vOUT = 18
vONE = 19
ACC = 20
BF = 68
RES = 100
TMP = 116
W4X = 148
W2R = 192
vID, vTOUCH = 252, 253


def gen_kb(opts):
    A = Asm()
    T = Tracer(A, opts.get("trace"), base=80)
    tr_on = set(opts.get("trsel", "").split("+")) if opts.get("trsel") else None

    def stamp(name):
        if tr_on is None or name in tr_on:
            T(name)

    def stores(fn):
        A(f"s_cmp_eq_u32 s{sMODE}, 1")
        A.either("s_cbranch_scc0", lambda: fn(""), lambda: fn(" sc1"))

    def flag_store(soff, imm):
        A("s_mov_b64 exec, 1")
        l2, l3 = A.label("SIGS"), A.label("SIGE")
        A(f"s_cmp_eq_u32 s{sMODE}, 1")
        A.raw(f"s_cbranch_scc0 {l2}")
        A(f"buffer_store_dword v{vONE}, off, {srdn(SST)}, s{soff} offset:{imm}")
        A.raw(f"s_branch {l3}")
        A.raw(f"{l2}:")
        A.raw(f"buffer_store_dword v{vONE}, off, {srdn(SST)}, s{soff} offset:{imm} sc1")
        A.raw(f"{l3}:")
        A("s_mov_b64 exec, -1")

    def signal(phase, tok=None):
        A.wait_vm(tok)
        A.barrier()
        l = A.label("SIG")
        A(f"s_cmp_lg_u32 s{sW}, 0")
        A.raw(f"s_cbranch_scc1 {l}")
        A.begin_cond()
        A(f"s_lshl2_add_u32 s{sT}, s{sJ}, s{sFLAG}")
        flag_store(sT, 128 * phase)
        A.end_cond()
        A.raw(f"{l}:")

    def spin(vdst, vaddr, soff, imm):
        l, le = A.label("POLL"), A.label("POLLE")
        A.raw(f"s_mov_b32 s{sT + 1}, 0")
        A.raw(f"{l}:")
        A.raw(f"buffer_load_dword v{vdst}, v{vaddr}, {srdn(SST)}, s{soff} offen offset:{imm} sc1")
        A.raw(f"s_add_u32 s{sT + 1}, s{sT + 1}, 1")
        A.raw(f"s_cmp_gt_u32 s{sT + 1}, 0x200000")
        A.raw(f"s_cbranch_scc1 {le}")
        A.raw("s_waitcnt vmcnt(0)")
        A.raw(f"v_cmp_eq_u32 vcc, 0, v{vdst}")
        A.raw(f"s_cbranch_vccnz {l}")
        A.raw(f"{le}:")
        A.raw("s_waitcnt vmcnt(0)")

    def poll(phase):
        if opts.get("pollw0"):
            l = A.label("PW")
            A(f"s_cmp_lg_u32 s{sW}, 0")
            A.raw(f"s_cbranch_scc1 {l}")
            A.begin_cond()
            spin(vT0, vPOLL, sFLAG, 128 * phase)
            A.end_cond()
            A.raw(f"{l}:")
            A.raw("s_barrier")
        else:
            spin(vT0, vPOLL, sFLAG, 128 * phase)
            del A.vm[:]

    def gelu_pair(x, t, out):
        return [
            f"v_pk_mul_f32 {v(t, 2)}, {v(x, 2)}, {v(x, 2)}",
            f"v_pk_fma_f32 {v(t, 2)}, {v(t, 2)}, s[{sGC}:{sGC + 1}], s[{sGC}:{sGC + 1}] op_sel:[0,1,0] op_sel_hi:[1,1,0]",
            f"v_pk_mul_f32 {v(t, 2)}, {v(t, 2)}, {v(x, 2)}",
            f"v_exp_f32 v{t}, v{t}",
            f"v_exp_f32 v{t + 1}, v{t + 1}",
            f"v_pk_add_f32 {v(t, 2)}, {v(t, 2)}, 1.0 op_sel_hi:[1,0]",
            f"v_rcp_f32 v{t}, v{t}",
            f"v_rcp_f32 v{t + 1}, v{t + 1}",
            f"v_pk_mul_f32 {v(t, 2)}, {v(t, 2)}, {v(x, 2)}",
            f"v_cvt_pk_bf16_f32 v{out}, v{t}, v{t + 1}",
        ]

    def zipped(lists):
        out = []
        for k in range(max(len(x) for x in lists)):
            for x in lists:
                if k < len(x):
                    out.append(x[k])
        return out

    def wload(dst, soff, k):
        out = []
        if k and k % 4 == 0:
            out.append(f"s_add_u32 s{soff}, s{soff}, 0x1000")
        out.append(f"buffer_load_dwordx4 {dst}, v{vL16}, {srdn(SWT)}, s{soff} offen offset:{1024 * (k % 4)}")
        return out

    def w4reg(f):
        if f < 11:
            return v(W4X + 4 * f, 4)
        if f < 27:
            return a(4 * (f - 11), 4)
        return v(W2R + 4 * (f - 27), 4)

    w1q = [wload(a(4 * k, 4), sW1, k) for k in range(16)]
    w2q = [wload(v(W2R + 4 * k, 4), sW2, k) for k in range(16)]
    w3q = [wload(a(64 + 64 * t + 4 * k, 4), sW3 + t, k) for t in range(3) for k in range(16)]
    w4q = [wload(w4reg(f), sW4, f) for f in range(43)]

    def emit(groups):
        for x in groups:
            A("\n".join(x))

    A("s_cmp_ge_u32 s2, 256")
    A("s_cbranch_scc1 KB_END")
    T("rstart", True)
    T("start")
    pK, pWS, pQ, pO = 48, 52, 56, 58
    A(f"s_load_dwordx4 s[{pK}:{pK + 3}], s[0:1], {A_SSMK}")
    A(f"s_load_dwordx2 s[{pWS}:{pWS + 1}], s[0:1], {A_WS}")
    A(f"s_load_dwordx2 s[{pQ}:{pQ + 1}], s[0:1], {A_Q}")
    A(f"s_load_dwordx2 s[{pO}:{pO + 1}], s[0:1], {A_OUT}")
    A("v_lshrrev_b32 v2, 6, v0")
    A("v_and_b32 v1, 63, v0")
    A(f"v_readfirstlane_b32 s{sW}, v2")
    A(f"s_and_b32 s{sG}, s2, 7")
    A(f"s_lshr_b32 s{sI}, s2, 3")
    A(f"s_lshr_b32 s{sKH}, s{sW}, 1")
    A(f"s_and_b32 s{sNH}, s{sW}, 1")
    A(f"s_lshr_b32 s{sC}, s{sI}, 3")
    A(f"s_lshl2_add_u32 s{sC}, s{sG}, s{sC}")
    A(f"s_and_b32 s{sJ}, s{sI}, 7")
    A(f"v_lshlrev_b32 v{vL16}, 4, v1")
    A(f"s_lshl1_add_u32 s60, s{sJ}, s{sKH}")
    A(f"s_lshl4_add_u32 s61, s{sC}, s60")
    A("s_lshl_b32 s61, s61, 12")
    A(f"s_mul_i32 s62, s{sC}, {CL_SZ}")
    A("s_lshl_b32 s60, s60, 12")
    A("s_add_u32 s60, s60, s62")
    A(f"s_lshl_b32 s63, s{sNH}, 2")
    A(f"v_add_u32 v4, s63, v{vL16}")
    A("v_lshlrev_b32 v5, 5, v1")
    A(f"s_lshl_b32 s63, s{sNH}, 4")
    A("v_add_u32 v5, s63, v5")
    A(f"s_mul_i32 s63, s{sKH}, {U_CH}")
    A(f"s_mul_i32 s64, s{sNH}, 3072")
    A("s_add_u32 s63, s63, s64")
    A(f"s_add_u32 m0, s63, {CV_U}")
    A("s_movk_i32 s64, 0x400")
    A("s_movk_i32 s65, 0x800")
    A(f"s_mul_i32 s66, s{sKH}, {F_CH}")
    A(f"s_mul_i32 s67, s{sNH}, {F_COPY}")
    A("s_add_u32 s67, s67, s66")
    srd(A, SKV, pWS, "s60", 4096)
    A(f"buffer_load_dwordx4 v5, {srdn(SKV)}, 0 offen lds")
    A(f"buffer_load_dwordx4 v5, {srdn(SKV)}, s64 offen offset:1024 lds")
    A(f"buffer_load_dwordx4 v5, {srdn(SKV)}, s65 offen offset:2048 lds")
    srd(A, SFI, pK, "s61", 4096)
    A(f"s_add_u32 m0, s67, {CV_F + 32}")
    for i in range(4):
        A(f"buffer_load_dwordx4 v4, {srdn(SFI)}, 0 offen offset:{1024 * i} lds")
    A("v_mov_b32 v6, 0x80000000")
    A("v_cmp_eq_u32 vcc, 7, v1")
    A(f"s_cmp_eq_u32 s{sNH}, 1")
    A("s_cselect_b64 s[64:65], vcc, 0")
    A("v_cndmask_b32 v6, v6, 0, s[64:65]")
    A(f"buffer_load_dword v7, v6, {srdn(SFI)}, 0 offen")
    tok_cv = A.mark()
    stamp("dma")
    srd(A, SST, pWS, WS_SM, SM_SZ)
    srd(A, SWT, pWS, WS_W1P, WS_XC - WS_W1P)
    A(f"s_lshl_b32 s{sYO}, s{sG}, 5")
    A(f"s_add_u32 s{sYO}, s{sYO}, s{sI}")
    A(f"s_lshl_b32 s63, s{sYO}, 2")
    A(f"s_load_dword s{sD}, s[{pK + 2}:{pK + 3}], s63")
    A(f"s_lshl_b32 s{sYO}, s{sYO}, 13")
    A(f"s_getreg_b32 s{sMODE}, hwreg(HW_REG_XCC_ID, 0, 4)")
    A(f"s_add_u32 s{sMODE}, s{sMODE}, 1")
    l = A.label("IDS")
    A(f"s_cmp_lg_u32 s{sW}, 0")
    A.raw(f"s_cbranch_scc1 {l}")
    A.begin_cond()
    A(f"s_lshl_b32 s63, s{sG}, 7")
    A(f"s_lshl2_add_u32 s63, s{sI}, s63")
    A(f"s_add_u32 s63, s63, {hex(SM_ID)}")
    A(f"v_mov_b32 v{vPOLL}, s{sMODE}")
    A("s_mov_b64 exec, 1")
    A(f"buffer_store_dword v{vPOLL}, off, {srdn(SST)}, s63 sc1")
    A("s_mov_b64 exec, -1")
    A.end_cond()
    A.raw(f"{l}:")
    A(f"s_lshl1_add_u32 s63, s{sJ}, s{sNH}")
    A(f"s_lshl_b32 s{sW1}, s63, 15")
    A(f"s_lshl_b32 s64, s{sKH}, 14")
    A(f"s_add_u32 s{sW1}, s{sW1}, s64")
    A(f"s_add_u32 s{sW2}, s{sW1}, {hex(WS_W2P - WS_W1P)}")
    A("v_min_u32 v6, 7, v1")
    A("v_lshlrev_b32 v6, 2, v6")
    A(f"s_add_u32 s64, s67, {CV_F}")
    A("v_add_u32 v6, s64, v6")
    A(f"s_mov_b32 s68, s66")
    A(f"s_mul_i32 s{sW4}, s63, {86 * 1024}")
    A(f"s_mul_i32 s64, s{sKH}, {43 * 1024}")
    A(f"s_add_u32 s{sW4}, s{sW4}, s64")
    A(f"s_add_u32 s{sW4}, s{sW4}, {hex(WS_W4P - WS_W1P)}")
    npre = opts.get("npre", 8)
    cvq = w1q + w3q[:opts.get("ncv", 32)]
    emit(cvq[:npre])
    srd(A, SCL, pWS, "s62", CL_SZ)
    A(f"s_mul_i32 s69, s{sC}, {XC_CL}")
    A(f"s_add_u32 s69, s69, {hex(WS_XC)}")
    srd(A, SXC, pWS, "s69", XC_CL)
    srd(A, SY, pWS, WS_Y, 0x200000)
    srd(A, SX, pQ, 0, 0x200000)
    A(f"s_lshl_b32 s70, s{sC}, 16")
    srd(A, SO, pO, "s70", 65536)
    A(f"s_mov_b64 s[0:1], s[{pWS}:{pWS + 1}]")
    if not opts.get("notouch"):
        A(f"s_lshl_b32 s70, s{sJ}, 8")
        A("v_add_u32 v8, s70, v0")
        A("v_lshlrev_b32 v9, 7, v8")
        A(f"s_sub_u32 s70, s69, {hex(WS_XC)}")
        A("v_add_u32 v10, s70, v9")
        A(f"s_lshl_b32 s70, s{sC}, 13")
        A(f"s_add_u32 s70, s70, {hex(WS_SM - WS_XC + SM_ST2 - 544 * 128)}")
        A("v_add_u32 v11, s70, v9")
        A("v_cmp_gt_u32 vcc, 544, v8")
        A("v_cndmask_b32 v10, v11, v10, vcc")
        A(f"s_lshl_b32 s70, s{sC}, 10")
        A(f"s_add_u32 s71, s70, {hex(WS_SM - WS_XC + SM_ST - 608 * 128)}")
        A("v_add_u32 v11, s71, v9")
        A("v_cmp_gt_u32 vcc, 608, v8")
        A("v_cndmask_b32 v10, v11, v10, vcc")
        A(f"s_add_u32 s71, s70, {hex(WS_SM - WS_XC + SM_FLAG - 616 * 128)}")
        A("v_add_u32 v11, s71, v9")
        A("v_cmp_gt_u32 vcc, 616, v8")
        A("v_cndmask_b32 v10, v11, v10, vcc")
        A(f"v_mov_b32 v11, {hex(HUGE)}")
        A("v_cmp_gt_u32 vcc, 620, v8")
        A("v_cndmask_b32 v10, v11, v10, vcc")
        srd(A, SKV, pWS, WS_XC, WS_END - WS_XC)
        A(f"buffer_load_dword v{vTOUCH}, v10, {srdn(SKV)}, 0 offen")
    A(f"s_lshl_b32 s{sFLAG}, s{sC}, 10")
    A(f"s_add_u32 s{sFLAG}, s{sFLAG}, {hex(SM_FLAG)}")
    A(f"s_mov_b32 s{sGC}, {fbits(C1)}")
    A(f"s_mov_b32 s{sGC + 1}, {fbits(C2)}")
    A(f"s_mov_b32 s{sINV}, {fbits(1.0 / 512)}")
    A(f"s_lshl_b32 s59, s{sW}, 3")
    A(f"s_add_u32 s59, s59, s{sJ}")
    for t in range(3):
        A(f"s_add_u32 s58, s59, {32 * t}")
        A(f"s_lshl_b32 s{sTILE + t}, s58, 11")
        A(f"s_lshl_b32 s{sW3 + t}, s58, 14")
        A(f"s_add_u32 s{sW3 + t}, s{sW3 + t}, {hex(WS_W3P - WS_W1P)}")
    A("s_cmp_lt_u32 s58, 86")
    A(f"s_cselect_b32 s{sTILE + 2}, s{sTILE + 2}, {hex(HUGE)}")
    A(f"s_cselect_b32 s{sW3 + 2}, s{sW3 + 2}, {hex(HUGE)}")
    A("v_and_b32 v8, 15, v1")
    A("v_lshrrev_b32 v9, 4, v1")
    A("v_add_u32 v10, 1, v8")
    A("v_and_b32 v11, 1, v10")
    A("v_lshlrev_b32 v11, 4, v11")
    A("v_bfe_u32 v12, v10, 1, 1")
    A(f"v_mul_u32_u24 v12, {F_COPY}, v12")
    A("v_and_b32 v10, 28, v10")
    A("v_lshl_add_u32 v12, v10, 1, v12")
    A("v_lshl_add_u32 v12, v9, 6, v12")
    A(f"s_lshl_b32 s59, s{sNH}, 8")
    A("s_add_u32 s59, s59, s68")
    A("v_add_u32 v12, s59, v12")
    A("v_lshlrev_b32 v13, 1, v9")
    A("v_sub_u32 v13, v13, v8")
    A(f"s_mul_i32 s58, s{sKH}, {U_CH}")
    A(f"s_lshl_b32 s59, s{sNH}, 7")
    A("s_add_u32 s58, s58, s59")
    A(f"s_add_u32 s58, s58, {CV_U + 240}")
    A("v_lshl_add_u32 v13, v13, 4, s58")
    A(f"s_lshl_b32 s59, s{sW}, 13")
    A(f"s_add_u32 s59, s59, {CV_X}")
    A(f"v_add_u32 v14, s59, v{vL16}")
    A(f"s_lshl_b32 s58, s{sW}, 11")
    A(f"s_add_u32 s59, s58, {CV_X}")
    A(f"v_add_u32 v15, s59, v{vL16}")
    A("v_lshrrev_b32 v16, 1, v9")
    A("v_mul_u32_u24 v16, 3072, v16")
    A("v_lshl_add_u32 v16, v8, 4, v16")
    A("v_and_b32 v17, 1, v9")
    A("v_lshl_add_u32 v16, v17, 3, v16")
    A(f"s_lshl_b32 s59, s{sW}, 9")
    A(f"s_sub_u32 s59, {CV_U + 3072 + 16 * 111 + 8}, s59")
    A("v_sub_u32 v16, s59, v16")
    A("v_lshlrev_b32 v17, 6, v8")
    A("v_lshl_add_u32 v17, v9, 4, v17")
    A("v_add_u32 v17, s58, v17")
    A(f"v_min_u32 v{vPOLL}, 31, v1")
    A(f"v_lshlrev_b32 v{vPOLL}, 2, v{vPOLL}")
    A(f"v_mov_b32 v{vONE}, 1")
    A("s_mov_b64 exec, 0xff")
    A("ds_write_b32 v6, v7")
    A("s_mov_b64 exec, -1")
    A.barrier(vm_tok=tok_cv)
    stamp("cvgo")

    CA, BB, AR, TL = 20, 52, 116, 244

    def areg(i, d):
        return AR + 16 * i + d if d < 16 else TL + i

    def a_reads(f, i):
        out = []
        for pr in {0: (0, 1, 2), 1: (3, 4), 2: (5, 6), 3: (7,)}[f]:
            out.append(f"ds_read_b64 {v(AR + 16 * i + 2 * pr, 2)}, v12 offset:{512 * i + 8 * pr}")
        if f == 3:
            out.append(f"ds_read_b32 v{TL + i}, v12 offset:{512 * i + 64}")
        return out

    def a_align(f, i):
        return [f"v_alignbit_b32 v{areg(i, d)}, v{areg(i, d + 1)}, v{areg(i, d)}, v11" for d in range(4 * f, 4 * f + 4)]

    def b_read(f, e):
        return f"ds_read_b128 {v(BB + 32 * (f & 1) + 4 * e, 4)}, v13 offset:{(f & 1) * 3072 + 16 * (112 - 16 * e + (f >> 1))}"

    def mf(f, i, e):
        J = i + e
        c = "0" if (f == 0 and i == 0) else v(CA + 4 * J, 4)
        return f"v_mfma_f32_16x16x32_bf16 {v(CA + 4 * J, 4)}, {v(AR + 16 * i + 4 * f, 4)}, {v(BB + 32 * (f & 1) + 4 * e, 4)}, {c}"

    A("\n".join(a_reads(0, 0) + [b_read(0, e) for e in range(8)] + a_reads(0, 1)))
    A("\n".join(a_align(0, 0)))
    A.bg_start(cvq[npre:], opts.get("cvper", 48), ("mfma",))
    for f in range(3):
        M = [mf(f, i, e) for i in range(8) for e in range(8 - i)]
        nxt_r = []
        for i in range(8):
            nxt_r += a_reads(f + 1, i) + [b_read(f + 1, i)]
        nxt_a = [x for i in range(8) for x in a_align(f + 1, i)]
        if f == 0:
            k = 0
            rest = nxt_r + nxt_a
            for i in range(8):
                g = M[k:k + 8 - i]
                k += 8 - i
                fill = (a_reads(0, i + 2) if i + 2 < 8 else []) + (a_align(0, i + 1) if i < 7 else [])
                room = max(0, int(2.5 * len(g)) - len(fill))
                if i < 6:
                    take = min(room, len(nxt_r))
                    fill = fill + nxt_r[:take]
                    nxt_r = nxt_r[take:]
                A("\n".join(interleave(g, fill)))
            A("\n".join(nxt_r))
            A("\n".join(nxt_a[:8]))
            carry = nxt_a[8:]
        else:
            fill = carry + nxt_r + nxt_a[:8]
            carry = nxt_a[8:]
            A("\n".join(interleave(M, fill)))
    A.bg_stop()
    A(f"s_lshl_b32 s57, s{sG}, 7")
    A(f"s_add_u32 s57, s57, {hex(SM_ID)}")
    A(f"buffer_load_dword v{vID}, v{vPOLL}, {srdn(SST)}, s57 offen sc1")
    pend = []
    for J in range(8):
        fill = carry[:4] if J >= 1 else []
        if J >= 1:
            carry = carry[4:]
        fill = fill + pend
        pend = [f"ds_write_b128 v14, {v(CA + 4 * J, 4)} offset:{1024 * J}"]
        A("\n".join(interleave([mf(3, i, J - i) for i in range(J + 1)], fill)))
    assert not carry
    KV = 52
    for c in range(2):
        for jj in range(2):
            A(f"ds_read_b64 {v(KV + 4 * c + 2 * jj, 2)}, v16 offset:{c * U_CH + 256 * (1 - jj)}")
    A("\n".join(pend))
    stamp("cvend")
    A(f"s_lshl_b32 s58, s{sD}, 16")
    A(f"s_and_b32 s59, s{sD}, 0xffff0000")
    KF = 100
    for c in range(2):
        for jj in range(2):
            k0, t = KV + 4 * c + 2 * jj, KF + 8 * c + 4 * jj
            A(f"v_and_b32 v{t}, 0xffff0000, v{k0 + 1}")
            A(f"v_lshlrev_b32 v{t + 1}, 16, v{k0 + 1}")
            A(f"v_and_b32 v{t + 2}, 0xffff0000, v{k0}")
            A(f"v_lshlrev_b32 v{t + 3}, 16, v{k0}")
    A.barrier()
    X = 64
    for jj in range(2):
        for src in range(4):
            A(f"ds_read_b128 {v(X + 16 * jj + 4 * src, 4)}, v15 offset:{8192 * src + 1024 * jj}")
    for jj in range(2):
        for c in range(2):
            b, t = X + 16 * jj + 8 * c, KF + 8 * c + 4 * jj
            for h in range(2):
                A(f"v_pk_fma_f32 {v(b + 2 * h, 2)}, {v(t + 2 * h, 2)}, s[58:59], {v(b + 2 * h, 2)} op_sel:[0,{c},0] op_sel_hi:[1,{c},1]")
                A(f"v_pk_add_f32 {v(b + 2 * h, 2)}, {v(b + 2 * h, 2)}, {v(b + 4 + 2 * h, 2)}")
        o = 116 + 4 * jj
        for r in range(4):
            A(f"v_cvt_pk_bf16_f32 v{o + r}, v{X + 16 * jj + r}, v{X + 16 * jj + 8 + r}")
        A(f"buffer_store_dwordx4 {v(o, 4)}, v17, {srdn(SY)}, s{sYO} offen offset:{1024 * jj} sc1")
    tok = A.mark()
    stamp("yst")
    l = A.label("IDOK")
    A(f"v_cmp_eq_u32 vcc, 0, v{vID}")
    A.raw(f"s_cbranch_vccz {l}")
    A.begin_cond()
    spin(vID, vPOLL, 57, 0)
    A.end_cond()
    A.raw(f"{l}:")
    A(f"v_cmp_ne_u32 vcc, s{sMODE}, v{vID}")
    A("s_cmp_eq_u64 vcc, 0")
    A(f"s_cselect_b32 s{sMODE}, 1, 0")
    if opts.get("safe"):
        A(f"s_mov_b32 s{sMODE}, 0")
    A(f"s_lshl_b32 s58, s{sC}, 6")
    A(f"s_lshl3_add_u32 s58, s{sJ}, s58")
    A(f"v_lshrrev_b32 v{vT0}, 1, v1")
    A(f"v_lshlrev_b32 v{vT0}, 15, v{vT0}")
    A(f"v_and_b32 v{vT1}, 1, v1")
    A(f"v_lshl_add_u32 v{vT0}, v{vT1}, 4, v{vT0}")
    A(f"s_lshl_b32 s59, s{sW}, 13")
    A("s_lshl2_add_u32 s59, s58, s59")
    A(f"v_add_u32 v{vB0}, s59, v{vT0}")
    A(f"s_cmp_eq_u32 s{sJ}, 0")
    A(f"s_cselect_b32 s57, -16, {hex(HUGE)}")
    A(f"s_cmp_eq_u32 s{sJ}, 7")
    A("s_cselect_b32 s57, 32, s57")
    A(f"v_lshlrev_b32 v{vB1}, 15, v1")
    A("s_add_u32 s59, s59, s57")
    A(f"v_add_u32 v{vB1}, s59, v{vB1}")
    A(f"s_lshl1_add_u32 s59, s{sW}, s58")
    A("s_lshl_b32 s55, s59, 3")
    A(f"s_add_u32 s55, s55, {hex(WS_SM + SM_XST)}")
    A(f"s_load_dwordx4 s[{sSTAT}:{sSTAT + 3}], s[0:1], s55")
    A("s_lshl_b32 s59, s59, 10")
    A(f"v_add_u32 v{vT2}, s59, v{vL16}")
    A(f"s_cmp_eq_u32 s{sJ}, 0")
    A("s_cselect_b32 s56, -2, 64")
    A(f"s_add_u32 s56, s56, s{sW}")
    A(f"s_cmp_lt_u32 s{sW}, 2")
    A(f"s_cselect_b32 s55, s57, {hex(HUGE)}")
    A(f"s_add_u32 s{sHALO}, s56, 2")
    A(f"s_lshl_b32 s{sHALO}, s{sHALO}, 10")
    A(f"s_cmp_eq_u32 s55, {hex(HUGE)}")
    A(f"s_cselect_b32 s{sHALO}, {hex(HUGE)}, s{sHALO}")
    A(f"s_lshl_b32 s57, s{sC}, 6")
    A("s_add_u32 s57, s57, s56")
    A(f"s_cmp_eq_u32 s55, {hex(HUGE)}")
    A("s_cselect_b32 s57, -1, s57")
    A("s_cmp_lt_u32 s57, 2048")
    A("s_cselect_b32 s52, 1, 0")
    A("s_cselect_b32 s56, s57, 0")
    A("s_lshl_b32 s55, s56, 3")
    A(f"s_add_u32 s55, s55, {hex(WS_SM + SM_XST)}")
    A(f"s_load_dwordx2 s[{sSTAT + 4}:{sSTAT + 5}], s[0:1], s55")
    A("s_lshl_b32 s56, s56, 10")
    A("s_cmp_eq_u32 s52, 1")
    A(f"s_cselect_b32 s56, s56, {hex(HUGE)}")
    A(f"v_add_u32 v{vT3}, s56, v{vL16}")
    A(f"s_lshl_b32 s59, s{sW}, 3")
    A(f"s_add_u32 s59, s59, {YS}")
    A(f"v_lshl_add_u32 v{vA0}, v1, 5, s59")
    A(f"s_cmp_eq_u32 s{sJ}, 0")
    A("s_cselect_b32 s59, 2, 0")
    A(f"s_add_u32 s59, s59, s{sNH}")
    A("s_lshl_b32 s59, s59, 2")
    A(f"s_add_u32 s59, s59, {YS + 8192}")
    A(f"v_add_u32 v{vA1}, s59, v{vL16}")
    A(f"s_lshl_b32 s53, s{sG}, 7")
    A.wait_vm(tok)
    A.barrier()
    stamp("ydrain")
    l = A.label("E2A")
    A(f"s_cmp_lg_u32 s{sW}, 0")
    A.raw(f"s_cbranch_scc1 {l}")
    A.begin_cond()
    A(f"s_lshl2_add_u32 s59, s{sI}, s53")
    A(f"s_add_u32 s59, s59, {hex(SM_LF)}")
    flag_store(59, 0)
    A(f"s_cmp_lg_u32 s{sI}, 0")
    A.raw(f"s_cbranch_scc1 {l}")
    A(f"s_add_u32 s59, s53, {hex(SM_LF)}")
    spin(vT0, vPOLL, 59, 0)
    A(f"v_lshlrev_b32 v{vT0}, 7, v1")
    A(f"s_lshl_b32 s59, s{sG}, 2")
    A(f"s_add_u32 s59, s59, {hex(SM_GF)}")
    A("s_mov_b64 exec, 0xff")
    A(f"buffer_store_dword v{vONE}, v{vT0}, {srdn(SST)}, s59 offen sc1")
    A("s_mov_b64 exec, -1")
    A.end_cond()
    A.raw(f"{l}:")
    if not opts.get("nolb"):
        l = A.label("E2B")
        A(f"s_cmp_lg_u32 s{sI}, 0")
        A.raw(f"s_cbranch_scc1 {l}")
        A.raw("s_barrier")
        A.raw(f"{l}:")
    XR, XF, QF, YR, YF, S1, S2, TT = 20, 32, 56, 80, 92, 116, 120, 124
    A(f"buffer_load_dwordx4 {v(XR, 4)}, v{vT2}, {srdn(SX)}, 0 offen")
    A(f"buffer_load_dwordx4 {v(XR + 4, 4)}, v{vT2}, {srdn(SX)}, 0 offen offset:1024")
    A(f"buffer_load_dwordx4 {v(XR + 8, 4)}, v{vT3}, {srdn(SX)}, 0 offen")
    rest_q = w3q[opts.get("ncv", 32):]
    ne2 = opts.get("ne2", 16)
    e2q = (w2q + rest_q)
    emit(e2q[:ne2])
    rest_q = e2q[ne2:]
    A(f"v_min_u32 v{vPOLL}, 7, v1")
    A(f"v_lshlrev_b32 v{vPOLL}, 2, v{vPOLL}")
    A("s_cmp_eq_u32 s52, 1")
    A(f"s_cselect_b64 s[{sSTAT + 4}:{sSTAT + 5}], s[{sSTAT + 4}:{sSTAT + 5}], 0")
    for r in range(3):
        for i in range(4):
            unpack(A, XF + 8 * r + 2 * i, XF + 8 * r + 2 * i + 1, XR + 4 * r + i)
    for r in range(3):
        sp = f"s[{sSTAT + 2 * r}:{sSTAT + 2 * r + 1}]"
        for i in range(4):
            A(f"v_pk_fma_f32 {v(QF + 8 * r + 2 * i, 2)}, {v(XF + 8 * r + 2 * i, 2)}, {sp}, {sp} op_sel:[0,0,1] op_sel_hi:[1,0,1] neg_lo:[0,0,1] neg_hi:[0,0,1]")
    l = A.label("E2C")
    A(f"s_cmp_lg_u32 s{sW}, 0")
    A.raw(f"s_cbranch_scc1 {l}")
    A.begin_cond()
    A(f"s_add_u32 s59, s53, {hex(SM_GF)}")
    spin(vT0, vPOLL, 59, 0)
    A.end_cond()
    A.raw(f"{l}:")
    A.raw("s_barrier")
    stamp("e2")
    A(f"s_lshl_b32 s59, s{sW}, 11")
    A(f"s_add_u32 m0, s59, {YS}")
    A("s_mov_b32 s58, 0x100000-1024")
    A(f"buffer_load_dwordx4 v{vB0}, {srdn(SY)}, 0 offen sc1 lds")
    A(f"buffer_load_dwordx4 v{vB0}, {srdn(SY)}, s58 offen offset:1024 sc1 lds")
    A(f"s_lshl_b32 s59, s{sW}, 10")
    A(f"s_add_u32 m0, s59, {YS + 8192}")
    A(f"buffer_load_dwordx4 v{vB1}, {srdn(SY)}, 0 offen sc1 lds")
    tok_y = A.mark()
    A(f"s_lshr_b32 s59, s{sJ}, 1")
    A("s_lshl_b32 s59, s59, 2")
    A("s_lshr_b32 s59, 0x4031, s59")
    A("s_and_b32 s59, s59, 15")
    A(f"s_lshl_b32 s58, s{sNH}, 5")
    A("s_add_u32 s59, s59, s58")
    A("s_lshl_b32 s59, s59, 10")
    A(f"s_lshl_b32 s58, s{sKH}, 9")
    A("s_add_u32 s59, s59, s58")
    A(f"v_lshrrev_b32 v{vT0}, 3, v1")
    A(f"v_lshlrev_b32 v{vT0}, 10, v{vT0}")
    A(f"v_add_u32 v{vT0}, s59, v{vT0}")
    A(f"v_and_b32 v{vT1}, 7, v1")
    A(f"v_lshrrev_b32 v{vT2}, 4, v1")
    A(f"v_xor_b32 v{vT1}, v{vT1}, v{vT2}")
    A(f"v_lshl_add_u32 v{vB0H}, v{vT1}, 4, v{vT0}")
    A(f"v_xor_b32 v{vB1H}, 64, v{vB0H}")
    A(f"s_lshl_b32 s58, s{sW}, 12")
    A(f"s_add_u32 s58, s58, {RED}")
    A(f"v_add_u32 v{vRW}, s58, v{vL16}")
    A(f"v_xor_b32 v{vRR}, 8192, v{vRW}")
    A(f"v_and_b32 v{vT0}, 31, v1")
    A(f"v_lshrrev_b32 v{vT1}, 5, v1")
    A(f"v_lshlrev_b32 v{vT1}, 5, v{vT1}")
    A(f"v_lshl_add_u32 v{vT1}, v{vT0}, 10, v{vT1}")
    A(f"s_lshl_b32 s58, s{sKH}, 15")
    A(f"s_lshl_b32 s57, s{sJ}, 7")
    A("s_add_u32 s58, s58, s57")
    A(f"s_lshl_b32 s57, s{sNH}, 6")
    A("s_add_u32 s58, s58, s57")
    A(f"v_add_u32 v{vOUT}, s58, v{vT1}")
    A(f"s_lshl_b32 s59, s{sJ}, 3")
    A(f"s_lshl1_add_u32 s59, s{sW}, s59")
    A("s_lshl_b32 s57, s59, 4")
    A(f"s_lshl_b32 s56, s{sC}, 10")
    A("s_add_u32 s57, s57, s56")
    A("s_add_u32 s59, s59, 2")
    A("s_lshl_b32 s59, s59, 10")
    A(f"v_and_b32 v{vT2}, 47, v1")
    A(f"v_cmp_eq_u32 vcc, 0, v{vT2}")
    A(f"v_mov_b32 v{vT3}, {hex(HUGE)}")
    A(f"v_cndmask_b32 v{vT2}, v{vT3}, v1, vcc")
    A.barrier(vm_tok=tok_y)
    stamp("yin")
    for i in range(4):
        A(f"ds_read_b64 {v(YR + 2 * i, 2)}, v{vA0} offset:{2048 * i}")
    for i in range(4):
        A(f"ds_read_b32 v{YR + 8 + i}, v{vA1} offset:{1024 * i}")
    for r in range(3):
        for i in range(4):
            unpack(A, YF + 8 * r + 2 * i, YF + 8 * r + 2 * i + 1, YR + 2 * i + r if r < 2 else YR + 8 + i)
    for r in range(3):
        for i in range(4):
            o = 8 * r + 2 * i
            A(f"v_pk_fma_f32 {v(XF + o, 2)}, {v(QF + o, 2)}, {v(YF + o, 2)}, {v(XF + o, 2)}")
    rowstats(A, 3, XF, S1, S2, TT, sINV)
    Z = 136
    A(f"v_add_f32 v{Z + 4}, {fbits(1e-5)}, v{S2}")
    A(f"v_rsq_f32 v{Z + 5}, v{Z + 4}")
    A(f"v_mov_b32 v{Z}, v{S1}")
    A(f"v_mul_f32 v{Z + 1}, v{Z + 4}, v{Z + 5}")
    A(f"v_mul_f32 v{Z + 6}, v{Z + 5}, v{Z + 5}")
    A(f"v_fmaak_f32 v{Z + 6}, v{Z + 6}, v{S2}, {fbits(1e-5)}")
    A(f"v_rsq_f32 v{Z + 7}, v{Z + 6}")
    A(f"v_mov_b32 v{Z + 3}, 0")
    A(f"v_mul_f32 v{Z + 2}, v{Z + 6}, v{Z + 7}")
    A(f"v_mul_f32 v{Z + 5}, v{Z + 5}, v{Z + 7}")
    A(f"v_mul_f32 v{Z + 4}, v{Z + 5}, v{S1}")
    for r in range(3):
        A(f"v_readlane_b32 s{sSTAT + 2 * r}, v{Z + 5}, {16 * r}")
        A(f"v_readlane_b32 s{sSTAT + 2 * r + 1}, v{Z + 4}, {16 * r}")
    for r in range(3):
        sp = f"s[{sSTAT + 2 * r}:{sSTAT + 2 * r + 1}]"
        for i in range(4):
            A(f"v_pk_fma_f32 {v(QF + 8 * r + 2 * i, 2)}, {v(XF + 8 * r + 2 * i, 2)}, {sp}, {sp} op_sel:[0,0,1] op_sel_hi:[1,0,1] neg_lo:[0,0,1] neg_hi:[0,0,1]")
    for r in range(3):
        for i in range(4):
            A(f"v_cvt_pk_bf16_f32 v{XR + 4 * r + i}, v{QF + 8 * r + 2 * i}, v{QF + 8 * r + 2 * i + 1}")

    def st25(p):
        A(f"buffer_store_dwordx4 {v(XR, 4)}, v{vL16}, {srdn(SXC)}, s59 offen{p}")
        A(f"buffer_store_dwordx4 {v(XR + 4, 4)}, v{vL16}, {srdn(SXC)}, s59 offen offset:1024{p}")
        A(f"buffer_store_dwordx4 {v(XR + 8, 4)}, v{vL16}, {srdn(SXC)}, s{sHALO} offen{p}")
        A(f"buffer_store_dwordx4 {v(Z, 4)}, v{vT2}, {srdn(SST)}, s57 offen{p}")
    stores(st25)
    tok = A.mark()
    stamp("p25")
    A(f"v_and_b32 v{vT0}, 31, v1")
    A(f"v_lshrrev_b32 v{vT1}, 5, v1")
    A(f"v_bfe_u32 v{vT2}, v1, 1, 3")
    A(f"v_xor_b32 v{vT1}, v{vT1}, v{vT2}")
    A(f"v_lshlrev_b32 v{vT1}, 4, v{vT1}")
    A(f"v_lshl_add_u32 v{vT1}, v{vT0}, 7, v{vT1}")
    A(f"s_mul_i32 s58, s{sKH}, {8192 + 4096}")
    A(f"v_add_u32 v{vA0}, s58, v{vT1}")
    for k in (1, 2, 3):
        A(f"v_xor_b32 v{vA0 + k}, {32 * k}, v{vA0}")
    for k in range(4):
        A(f"v_xor_b32 v{vB0 + k if k < 2 else vT2 + k - 2}, 4096, v{vA0 + k}")
    sent = [vB0, vB1, vT2, vT3]
    A(f"v_lshlrev_b32 v{vT1}, 4, v{vT0}")
    signal(0, tok)
    stamp("sig0")
    poll(0)
    stamp("poll0")

    def gemm32(chunks, dma, wreg, rd0, rd1, ahead, after_dma=None, tail_bg=None, ring=None, nm=''):
        steps = [(ci, sp) for ci, ns in enumerate(chunks) for sp in range(ns)]
        D = 4
        toks = {}
        opened = set()
        issued = [0]

        def issue(i, now):
            g = dma(i)
            if now:
                emit(g)
                toks[i] = A.mark()
            else:
                g[-1] = g[-1] + [("mark", i)]
                A.bg = A.bg + g
            issued[0] = i + 1
            if i == len(chunks) - 1 and after_dma:
                if now:
                    emit(after_dma)
                else:
                    A.bg = A.bg + after_dma

        orig_one = A.one

        def one(x):
            if isinstance(x, tuple):
                toks[x[1]] = A.mark()
                return None
            return orig_one(x)
        A.one = one
        for i in range(min(ahead, len(chunks))):
            issue(i, True)
        A.bg_start([], opts.get("gper", 56), ("mfma",))

        def read(k):
            ci, sp = steps[k]
            if ci not in opened:
                opened.add(ci)
                while ci not in toks:
                    A.bg_pop()
                if tr_on and f"{nm}w{ci}" in tr_on:
                    stamp(f"{nm}w{ci}")
                A.barrier(vm_tok=toks[ci])
                if tr_on and f"{nm}b{ci}" in tr_on:
                    stamp(f"{nm}b{ci}")
                nxt = issued[0]
                if nxt < len(chunks) and (ring is None or nxt - ring < ci):
                    issue(nxt, False)
                if ci == len(chunks) - 1 and tail_bg:
                    A.bg = A.bg + tail_bg
            b = BF + 8 * (k % D)
            A(f"ds_read_b128 {v(b, 4)}, {rd0(ci, sp)}")
            A(f"ds_read_b128 {v(b + 4, 4)}, {rd1(ci, sp)}")
        lag = opts.get("lag", 2)
        nread = 0
        while nread < D and steps[nread][0] == 0:
            read(nread)
            nread += 1
        for k, (ci, sp) in enumerate(steps):
            b = BF + 8 * (k % D)
            c0 = "0" if k == 0 else v(ACC, 16)
            c1 = "0" if k == 0 else v(ACC + 16, 16)
            A(f"v_mfma_f32_32x32x16_bf16 {v(ACC + 16, 16)}, {wreg(k)}, {v(b + 4, 4)}, {c1}")
            A(f"v_mfma_f32_32x32x16_bf16 {v(ACC, 16)}, {wreg(k)}, {v(b, 4)}, {c0}")
            while nread < len(steps) and nread <= k + D:
                if steps[nread][0] not in opened and nread - k - 1 > lag:
                    break
                read(nread)
                nread += 1
        A.one = orig_one
        A.bg_kinds = ("mfma", "valu")

    def reduce_pair():
        for q in range(4):
            A(f"ds_write_b128 v{vRW}, {v(ACC + 16 + 4 * q, 4)} offset:{1024 * q}")
        A.bg_pop(2)
        A.barrier()
        for q in range(4):
            A(f"ds_read_b128 {v(ACC + 16 + 4 * q, 4)}, v{vRR} offset:{1024 * q}")
        A.bg_pop(1)
        for q in range(8):
            A(f"v_pk_add_f32 {v(ACC + 2 * q, 2)}, {v(ACC + 2 * q, 2)}, {v(ACC + 16 + 2 * q, 2)}")

    XT, STT = TMP, TMP + 8
    A(f"s_lshl_b32 s58, s{sW}, 12")
    A(f"s_lshl_b32 s53, s{sC}, 10")
    A(f"s_lshl_b32 s56, s{sKH}, 9")
    A("s_add_u32 s53, s53, s56")

    def dma3(i):
        g = []
        for n in range(4):
            x = [f"s_add_u32 m0, s58, {STG0 + 16384 * i}"] if n == 0 else []
            x += [f"s_movk_i32 s56, {7168 * n + 128 * i}",
                  f"buffer_load_dwordx4 v{vB1H if n & 1 else vB0H}, {srdn(SXC)}, s56 offen offset:{1024 * n} sc1 lds"]
            g.append(x)
        return g
    after3 = [[f"buffer_load_dwordx4 {v(XT, 4)}, v{vOUT}, {srdn(SXC)}, 0 offen offset:2048 sc1"],
              [f"buffer_load_dwordx4 {v(XT + 4, 4)}, v{vOUT}, {srdn(SXC)}, 0 offen offset:2064 sc1"],
              [f"buffer_load_dwordx4 {v(STT, 4)}, v{vT1}, {srdn(SST)}, s53 offen sc1"]]
    if not opts.get("notouch"):
        A(f"s_mul_i32 s55, s{sJ}, {108 * 128}")
        A("s_add_u32 s55, s55, 65536")
        A(f"v_lshlrev_b32 v{RES}, 7, v0")
        A(f"v_mov_b32 v{RES + 1}, {hex(HUGE)}")
        A("v_cmp_gt_u32 vcc, 108, v0")
        A(f"v_cndmask_b32 v{RES}, v{RES + 1}, v{RES}, vcc")
        after3.append([f"buffer_load_dword v{RES + 1}, v{RES}, {srdn(SCL)}, s55 offen"])
    if opts.get("w4warm", 1):
        A(f"s_mul_i32 s52, s{sI}, {344 * 128}")
        A(f"s_add_u32 s52, s52, {hex(WS_W4P - WS_W1P)}")
        A(f"v_lshlrev_b32 v{RES + 2}, 7, v0")
        A(f"v_add_u32 v{RES + 3}, 0x8000, v{RES + 2}")
        A(f"v_mov_b32 v{RES + 4}, {hex(HUGE)}")
        A("v_cmp_gt_u32 vcc, 88, v0")
        A(f"v_cndmask_b32 v{RES + 3}, v{RES + 4}, v{RES + 3}, vcc")
        after3.append([f"buffer_load_dword v{RES + 4}, v{RES + 2}, {srdn(SWT)}, s52 offen"])
        after3.append([f"buffer_load_dword v{RES + 5}, v{RES + 3}, {srdn(SWT)}, s52 offen"])
    gemm32([4, 4, 4, 4], dma3, lambda st: a(4 * st, 4),
           lambda ci, sp: f"v{vA0 + sp} offset:{16384 * ci}",
           lambda ci, sp: f"v{sent[sp]} offset:{16384 * ci}",
           opts.get("ahead", 2), after3, rest_q, nm="p3")
    stamp("p3")
    reduce_pair()
    PK = BF + 16
    A("\n".join(zipped([gelu_pair(ACC + 2 * q, BF + 2 * q, PK + q) for q in range(8)])))
    A.bg_stop()
    A(f"s_lshl1_add_u32 s{sHALO}, s{sJ}, s{sNH}")
    A(f"s_lshl_b32 s{sHALO}, s{sHALO}, 12")
    A(f"s_lshl_b32 s58, s{sKH}, 10")
    A(f"s_add_u32 s{sHALO}, s{sHALO}, s58")

    def st3(p):
        A(f"buffer_store_dwordx4 {v(PK, 4)}, v{vL16}, {srdn(SCL)}, s{sHALO} offen{p}")
        A(f"buffer_store_dwordx4 {v(PK + 4, 4)}, v{vL16}, {srdn(SCL)}, s{sHALO} offen offset:2048{p}")
    stores(st3)
    tok = A.mark()
    A(f"s_mul_i32 s58, s{sKH}, {32768 + 1024}")
    A(f"s_add_u32 s58, s58, {STG1}")
    A(f"v_add_u32 v{vB0}, s58, v{vL16}")
    A(f"v_xor_b32 v{vB1}, 1024, v{vB0}")
    A(f"s_lshl_b32 s58, s{sKH}, 15")
    A(f"s_lshl_b32 s57, s{sNH}, 12")
    A("s_add_u32 s58, s58, s57")
    signal(1, tok)
    stamp("sig1")
    poll(1)
    stamp("poll1")

    def dma4(i):
        g = []
        for n in range(4):
            x = []
            if n == 0:
                if i:
                    x.append("s_add_u32 s58, s58, 8192")
                x.append(f"s_add_u32 m0, s58, {STG1}")
            x.append(f"buffer_load_dwordx4 v{vL16}, {srdn(SCL)}, s58 offen offset:{1024 * n} sc1 lds")
            g.append(x)
        return g
    n4 = opts.get("n4", 11)
    gemm32([4, 4, 4, 4], dma4, lambda st: v(W2R + 4 * st, 4),
           lambda ci, sp: f"v{vB0} offset:{2048 * (4 * ci + sp)}",
           lambda ci, sp: f"v{vB1} offset:{2048 * (4 * ci + sp)}",
           opts.get("ahead", 2), None, w4q[:n4], nm="p4")
    stamp("p4")
    XB = BF
    for q in range(8):
        unpack(A, XB + 2 * q, XB + 2 * q + 1, XT + q)
    for q in range(8):
        A(f"v_pk_mul_f32 {v(XB + 2 * q, 2)}, {v(XB + 2 * q, 2)}, {v(STT + 2, 2)} op_sel_hi:[1,0]")
    reduce_pair()
    for q in range(8):
        A(f"v_pk_add_f32 {v(ACC + 2 * q, 2)}, {v(ACC + 2 * q, 2)}, {v(XB + 2 * q, 2)}")
    for q in range(8):
        A(f"v_cvt_pk_bf16_f32 v{PK + q}, v{ACC + 2 * q}, v{ACC + 2 * q + 1}")
    A.bg_stop()

    def st4a(p):
        A(f"buffer_store_dwordx4 {v(PK, 4)}, v{vL16}, {srdn(SXC)}, s{sHALO} offen{p}")
        A(f"buffer_store_dwordx4 {v(PK + 4, 4)}, v{vL16}, {srdn(SXC)}, s{sHALO} offen offset:2048{p}")
    stores(st4a)
    for q in range(8):
        unpack(A, ACC + 2 * q, ACC + 2 * q + 1, PK + q)
    Y0 = ACC + 16
    A(f"v_pk_add_f32 {v(Y0, 2)}, {v(ACC, 2)}, {v(ACC + 2, 2)}")
    A(f"v_pk_mul_f32 {v(Y0 + 2, 2)}, {v(ACC, 2)}, {v(ACC, 2)}")
    for q in range(1, 8):
        if q > 1:
            A(f"v_pk_add_f32 {v(Y0, 2)}, {v(Y0, 2)}, {v(ACC + 2 * q, 2)}")
        A(f"v_pk_fma_f32 {v(Y0 + 2, 2)}, {v(ACC + 2 * q, 2)}, {v(ACC + 2 * q, 2)}, {v(Y0 + 2, 2)}")
    A(f"v_add_f32 v{Y0}, v{Y0}, v{Y0 + 1}")
    A(f"v_add_f32 v{Y0 + 2}, v{Y0 + 2}, v{Y0 + 3}")
    A(f"v_lshlrev_b32 v{vT0}, 2, v1")
    A(f"s_lshr_b32 s57, s{sHALO}, 3")
    A(f"s_lshl_b32 s56, s{sKH}, 7")
    A("s_add_u32 s57, s57, s56")
    A(f"v_permlane32_swap_b32 v{Y0}, v{Y0 + 2}")
    A(f"s_lshl_b32 s56, s{sC}, 13")
    A(f"s_add_u32 s56, s56, {hex(SM_ST2)}")
    A("s_add_u32 s57, s57, s56")
    A(f"v_add_f32 v{Y0}, v{Y0}, v{Y0 + 2}")
    stores(lambda p: A(f"buffer_store_dword v{Y0}, v{vT0}, {srdn(SST)}, s57 offen{p}"))
    tok = A.mark()
    for q in range(8):
        A(f"v_pk_fma_f32 {v(XB + 2 * q, 2)}, {v(XB + 2 * q, 2)}, {v(STT, 2)}, {v(STT, 2)} op_sel:[0,1,0] op_sel_hi:[1,1,0]")
    for q in range(8):
        A(f"v_pk_add_f32 {v(RES + 2 * q, 2)}, {v(ACC + 2 * q, 2)}, {v(XB + 2 * q, 2)}")
    A(f"v_and_b32 v{vT1}, 15, v1")
    A(f"v_lshrrev_b32 v{vT2}, 4, v1")
    A(f"v_lshrrev_b32 v{vT3}, 1, v{vT2}")
    A(f"v_lshlrev_b32 v{vA0}, 11, v{vT3}")
    A(f"v_lshlrev_b32 v{vA1}, 9, v{vT3}")
    A(f"v_and_b32 v{vT3}, 1, v{vT2}")
    A(f"v_lshl_add_u32 v{vA0}, v{vT3}, 9, v{vA0}")
    A(f"v_lshl_add_u32 v{vA0}, v{vT1}, 4, v{vA0}")
    A(f"v_lshl_add_u32 v{vA1}, v{vT3}, 3, v{vA1}")
    A(f"v_lshl_add_u32 v{vA1}, v{vT1}, 4, v{vA1}")
    A(f"v_lshlrev_b32 v{vA2}, 11, v{vT2}")
    A(f"v_lshl_add_u32 v{vA2}, v{vT1}, 2, v{vA2}")
    A(f"s_lshl_b32 s57, s{sKH}, 8")
    A(f"s_lshl_b32 s55, s{sNH}, 6")
    A("s_add_u32 s57, s57, s55")
    A("s_add_u32 s55, s57, s56")
    A(f"v_lshlrev_b32 v{vA3}, 3, v{vT1}")
    A(f"v_add_u32 v{vA3}, {ST3}, v{vA3}")
    CS = TMP
    ONES = BF + 4
    for k in range(4):
        A(f"v_mov_b32 v{ONES + k}, 0x3f803f80")
    csm = []
    for S in range(16):
        for t in range(3):
            c = "0" if S == 0 else v(CS + 4 * t, 4)
            csm.append(f"v_mfma_f32_16x16x32_bf16 {v(CS + 4 * t, 4)}, {a(64 + 64 * t + 4 * S, 4)}, {v(ONES, 4)}, {c}")
    ncs = opts.get("ncs", 16)
    A("\n".join(csm[:ncs]))
    signal(2, tok)
    stamp("sig2")
    A("\n".join(csm[ncs:]))
    poll(2)
    stamp("poll2")

    SP = TMP + 12
    RS = TMP + 20
    A(f"s_lshl_b32 s58, s{sW}, 12")

    def dma5(i):
        g = []
        for n in range(4):
            x = []
            if n == 0:
                if i:
                    x.append("s_add_u32 s58, s58, 16384")
                x.append("s_mov_b32 m0, s58")
            x.append(f"buffer_load_dwordx4 v{vL16}, {srdn(SXC)}, s58 offen offset:{1024 * n} sc1 lds")
            g.append(x)
        return g
    toks = {}
    orig_one = A.one

    def one5(x):
        if isinstance(x, tuple):
            toks[x[1]] = A.mark()
            return None
        return orig_one(x)
    A.one = one5
    q5 = []
    for i in range(4):
        g = dma5(i)
        g[-1] = g[-1] + [("mark", i)]
        q5 += g
    q5 += [[f"buffer_load_dword v{SP + 2 * z + st}, v{vA2}, {srdn(SST)}, s55 offen offset:{512 * z + 128 * st} sc1" for st in range(2)] for z in range(4)]
    n5stat = len(q5)
    q5 += w4q[n4:]
    ntot = len(q5)
    A.bg = q5
    A.bg_pop(8)
    A.bg_start([], opts.get("p5per", 64), ("mfma",))

    def p5_stats():
        A(f"v_add_f32 v{SP}, v{SP}, v{SP + 2}")
        A(f"v_add_f32 v{SP + 1}, v{SP + 1}, v{SP + 3}")
        A(f"v_add_f32 v{SP + 4}, v{SP + 4}, v{SP + 6}")
        A(f"v_add_f32 v{SP + 5}, v{SP + 5}, v{SP + 7}")
        A(f"v_add_f32 v{SP}, v{SP}, v{SP + 4}")
        A(f"v_add_f32 v{SP + 1}, v{SP + 1}, v{SP + 5}")
        for swap in ("v_permlane16_swap_b32", "v_permlane32_swap_b32"):
            A(f"v_mov_b32 v{SP + 2}, v{SP}")
            A(f"v_mov_b32 v{SP + 3}, v{SP + 1}")
            A(f"{swap} v{SP}, v{SP + 2}")
            A(f"{swap} v{SP + 1}, v{SP + 3}")
            A(f"v_add_f32 v{SP}, v{SP}, v{SP + 2}")
            A(f"v_add_f32 v{SP + 1}, v{SP + 1}, v{SP + 3}")
        A(f"v_mul_f32 v{SP}, s{sINV}, v{SP}")
        A(f"v_mul_f32 v{SP + 2}, v{SP}, v{SP}")
        A(f"v_fma_f32 v{SP + 1}, v{SP + 1}, s{sINV}, -v{SP + 2}")
        A(f"v_max_f32 v{SP + 1}, 0, v{SP + 1}")
        A(f"v_add_f32 v{SP + 1}, {fbits(1e-5)}, v{SP + 1}")
        A(f"v_rsq_f32 v{SP + 2}, v{SP + 1}")
        A(f"s_lshl_b32 s57, s{sW}, 7")
        A(f"v_add_u32 v{SP + 4}, s57, v{vA3}")
        A(f"v_mul_f32 v{SP + 3}, v{SP + 2}, -v{SP}")
        A("s_mov_b64 exec, 0xffff")
        A(f"ds_write_b64 v{SP + 4}, {v(SP + 2, 2)}")
        A("s_mov_b64 exec, -1")

    def rd(S):
        return [f"ds_read_b128 {v(BF + 16 * (S & 1) + 4 * u, 4)}, v{vA0} offset:{4096 * S + 1024 * (u >> 1) + 256 * (u & 1)}" for u in range(4)]
    A.barrier(vm_tok=toks[0])
    A("\n".join(rd(0)))
    for S in range(16):
        m5 = []
        for u in range(4):
            for t in range(3):
                d = v(ACC + 16 * t + 4 * u, 4)
                m5.append(f"v_mfma_f32_16x16x32_bf16 {d}, {a(64 + 64 * t + 4 * S, 4)}, {v(BF + 16 * (S & 1) + 4 * u, 4)}, {'0' if S == 0 else d}")
        if S % 4 == 3 and S < 15:
            A("\n".join(m5[:4]))
            nx = S // 4 + 1
            while nx not in toks:
                A.bg_pop()
            if S == 11:
                while ntot - len(A.bg) < n5stat:
                    A.bg_pop()
                p5_stats()
            A.barrier(vm_tok=toks[nx], lg=(S == 11))
            A("\n".join(interleave(m5[4:], rd(S + 1), ratio=1)))
            if S == 11:
                for u in range(4):
                    A(f"ds_read_b64 {v(RS + 2 * u, 2)}, v{vA3} offset:{128 * u}")
        else:
            A("\n".join(interleave(m5, rd(S + 1) if S < 15 else [], ratio=1)))
    A.one = orig_one
    A.bg_stop()
    stamp("p5")
    for t in range(3):
        seqs = []
        for u in range(4):
            for hh in range(2):
                x = ACC + 16 * t + 4 * u + 2 * hh
                tq = BF + 4 * u + 2 * hh
                rs = v(RS + 2 * u, 2)
                seqs.append([
                    f"v_pk_mul_f32 {v(x, 2)}, {v(x, 2)}, {rs} op_sel_hi:[1,0]",
                    f"v_pk_fma_f32 {v(x, 2)}, {v(CS + 4 * t + 2 * hh, 2)}, {rs}, {v(x, 2)} op_sel:[0,1,0] op_sel_hi:[1,1,1]",
                ] + gelu_pair(x, tq, BF + 16 + 8 * (t & 1) + 2 * u + hh))
        A("\n".join(zipped(seqs)))

        def st5(p):
            for u in range(4):
                A(f"buffer_store_dwordx2 {v(BF + 16 + 8 * (t & 1) + 2 * u, 2)}, v{vA1}, {srdn(SCL)}, s{sTILE + t} offen offset:{1024 * (u >> 1) + 256 * (u & 1)}{p}")
        stores(st5)
    tok = A.mark()
    A(f"s_mul_i32 s58, s{sKH}, {8192 + 1024}")
    A(f"v_add_u32 v{vB0}, s58, v{vL16}")
    A(f"v_xor_b32 v{vB1}, 1024, v{vB0}")
    A(f"v_add_u32 v{vB0H}, 0x10000, v{vB0}")
    A(f"v_add_u32 v{vB1H}, 0x10000, v{vB1}")
    A(f"s_mul_i32 s58, s{sKH}, {43 * 2048}")
    A(f"s_lshl_b32 s57, s{sNH}, 12")
    A("s_add_u32 s58, s58, s57")
    A(f"s_lshl_b32 s55, s{sW}, 12")
    signal(3, tok)
    stamp("sig3")
    poll(3)
    stamp("poll3")

    def dma6(i):
        g = []
        for n in range(4):
            x = []
            if n == 0:
                if i:
                    x.append("s_add_u32 s58, s58, 8192")
                x.append(f"s_add_u32 m0, s55, {16384 * (i % 8)}")
            x.append(f"buffer_load_dwordx4 v{vL16}, {srdn(SCL)}, s58 offen offset:{1024 * n} sc1 lds")
            g.append(x)
        return g
    gemm32([4] * 10 + [3], dma6, w4reg,
           lambda ci, sp: f"v{vB0H if (ci % 8) >= 4 else vB0} offset:{16384 * (ci % 4) + 2048 * sp}",
           lambda ci, sp: f"v{vB1H if (ci % 8) >= 4 else vB1} offset:{16384 * (ci % 4) + 2048 * sp}",
           opts.get("ahead6", 2), None, None, ring=8, nm="p6")
    A.bg_stop()
    stamp("p6")
    reduce_pair()
    for q in range(8):
        A(f"v_pk_add_f32 {v(ACC + 2 * q, 2)}, {v(ACC + 2 * q, 2)}, {v(RES + 2 * q, 2)}")
    for q in range(8):
        A(f"v_cvt_pk_bf16_f32 v{PK + q}, v{ACC + 2 * q}, v{ACC + 2 * q + 1}")
    A(f"buffer_store_dwordx4 {v(PK, 4)}, v{vOUT}, {srdn(SO)}, 0 offen")
    A(f"buffer_store_dwordx4 {v(PK + 4, 4)}, v{vOUT}, {srdn(SO)}, 0 offen offset:16")
    T.finish(0, 0, SX, vT0, extra=sMODE)
    A("KB_END:")
    A.trace_names = T.names
    return A, 512, 256
```

```python
import sys, os, json
sys.path.insert(0, os.path.dirname(os.path.abspath(__file__)))
from gen import kernel, module
import ka, kb
def build(opts):
    A = ka.gen_ka(opts); B = kb.gen_kb(opts)
    parts = [kernel("ka_kernel", *A), kernel("kb_kernel", *B)]
    launches = [("ka_kernel", 512, 256, 0), ("kb_kernel", 256, 256, kb.KB_LDS)]
    txt = module(parts, launches)
    if opts.get("trace"):
        txt += "\n; TRACE " + json.dumps([A[0].trace_names, B[0].trace_names]) + "\n"
    return txt
def parse(args):
    opts = {}
    for a in args:
        k, _, val = a.partition("=")
        try: opts[k] = int(val) if val else 1
        except ValueError: opts[k] = val
    return opts
if __name__ == "__main__":
    open(sys.argv[1], "w").write(build(parse(sys.argv[2:])))
```

```python
import re

REG_RE = re.compile(r'^(-?)(abs\()?([vas])(\d+)\)?$')
RNG_RE = re.compile(r'^(-?)([vas])\[(\d+):(\d+)\]$')

TRANS = ("v_exp_f32", "v_log_f32", "v_rcp_f32", "v_rsq_f32", "v_sqrt_f32", "v_sin_f32", "v_cos_f32")


def regs_of(op):
    op = op.strip()
    m = REG_RE.match(op)
    if m:
        return {m.group(3) + m.group(4)}
    m = RNG_RE.match(op)
    if m:
        return {m.group(2) + str(i) for i in range(int(m.group(3)), int(m.group(4)) + 1)}
    if op in ("vcc", "vcc_lo", "vcc_hi"):
        return {"vcc"}
    if op in ("exec", "exec_lo", "exec_hi"):
        return {"exec"}
    if op == "m0":
        return {"m0"}
    return set()


def split_ops(s):
    out, depth, cur = [], 0, ""
    for ch in s:
        if ch in "[(":
            depth += 1
        if ch in "])":
            depth -= 1
        if ch == "," and depth == 0:
            out.append(cur.strip())
            cur = ""
        else:
            cur += ch
    if cur.strip():
        out.append(cur.strip())
    return out


class Ins:
    __slots__ = ("text", "mn", "kind", "rd", "wr", "cond", "states", "passes", "A", "B", "C", "D",
                 "wide_data", "is_dpp", "is_trans", "is_perm", "is_rdlane", "lds_dma", "sgpr_rd", "label", "sdwa_dst")

    def __init__(self, text, cond):
        self.text = text
        self.cond = cond
        self.rd, self.wr = set(), set()
        self.states = 1
        self.passes = 0
        self.A = self.B = self.C = self.D = set()
        self.wide_data = set()
        self.is_dpp = self.is_trans = self.is_perm = self.is_rdlane = self.lds_dma = False
        self.sdwa_dst = False
        self.label = None
        t = text.split(";")[0].strip()
        if not t:
            self.kind, self.mn, self.states = "none", "", 0
            return
        if t.endswith(":") or t.startswith("."):
            self.kind, self.mn, self.states = "none", "", 0
            if t.endswith(":"):
                self.label = t[:-1]
            return
        parts = t.split(None, 1)
        mn = self.mn = parts[0]
        rest = parts[1] if len(parts) > 1 else ""
        ops = split_ops(rest)
        mods = ""
        if ops:
            last = ops[-1].split(None, 1)
            if len(last) > 1:
                ops[-1], mods = last[0], last[1]
        R = [regs_of(o) for o in ops]
        allr = set().union(*R) if R else set()
        if mn.startswith("v_mfma"):
            self.kind = "mfma"
            self.D, self.A, self.B, self.C = R[0], R[1], R[2], R[3]
            self.wr = set(R[0])
            self.rd = R[1] | R[2] | R[3]
            self.passes = 8 if "32x32" in mn else 4
        elif mn.startswith("v_"):
            self.kind = "valu"
            base = mn
            for sfx in ("_e32", "_e64", "_dpp", "_sdwa"):
                if base.endswith(sfx):
                    base = base[: -len(sfx)]
            self.is_dpp = mn.endswith("_dpp")
            self.is_trans = base in TRANS
            if mn.endswith("_sdwa") and "dst_sel:DWORD" not in mods:
                self.sdwa_dst = True
            if base == "v_nop":
                pass
            elif base.startswith("v_permlane") and "swap" in base:
                self.is_perm = True
                self.rd = set(allr)
                self.wr = set(allr)
            elif base.startswith("v_cmp"):
                assert not base.startswith("v_cmpx")
                self.wr = set(R[0])
                self.rd = set().union(*R[1:])
            elif base in ("v_add_co_u32", "v_sub_co_u32", "v_addc_co_u32", "v_subb_co_u32"):
                self.wr = R[0] | R[1]
                self.rd = set().union(*R[2:])
            else:
                self.wr = set(R[0])
                self.rd = set().union(*R[1:]) if len(R) > 1 else set()
                if base in ("v_fmac_f32", "v_dot2c_f32_bf16", "v_writelane_b32") or self.is_dpp or self.sdwa_dst:
                    self.rd |= R[0]
                if base in ("v_readlane_b32", "v_readfirstlane_b32"):
                    self.is_rdlane = True
        elif mn.startswith("ds_"):
            self.kind = "ds"
            if mn.startswith("ds_read") or mn.startswith("ds_bpermute") or mn.startswith("ds_permute") or mn.startswith("ds_swizzle"):
                self.wr = set(R[0])
                self.rd = set().union(*R[1:])
            else:
                self.rd = set(allr)
        elif mn.startswith("buffer_") or mn.startswith("global_"):
            self.kind = "vmem"
            is_lds = " lds" in (" " + mods) or "_lds_" in mn
            if mn in ("buffer_wbl2", "buffer_inv"):
                pass
            elif is_lds:
                self.lds_dma = True
                self.rd = set(allr) | {"m0"}
            elif "_load_" in mn:
                self.wr = set(R[0])
                self.rd = set().union(*R[1:])
            elif "_atomic_" in mn and "sc0" in mods:
                self.wr = set(R[0])
                self.rd = set(allr)
            else:
                self.rd = set(allr)
                if mn.endswith("x4") or mn.endswith("x3"):
                    self.wide_data = R[0] if mn.startswith("buffer_") else R[1]
        elif mn.startswith("s_load") or mn.startswith("s_buffer_load") or mn in ("s_memtime", "s_memrealtime"):
            self.kind = "smem"
            self.wr = set(R[0])
            self.rd = set().union(*R[1:]) if len(R) > 1 else set()
        elif mn == "s_nop":
            self.kind = "nop"
            self.states = int(ops[0]) + 1
        elif mn == "s_waitcnt":
            self.kind = "wait"
        elif mn.startswith("s_"):
            self.kind = "salu"
            if mn.startswith("s_cmp") or mn.startswith("s_bitcmp") or mn.startswith("s_cbranch") or mn in (
                    "s_branch", "s_barrier", "s_endpgm", "s_sleep", "s_setprio"):
                self.rd = set(allr)
                if "vcc" in mn:
                    self.rd |= {"vcc"}
            else:
                self.wr = set(R[0]) if R else set()
                self.rd = set().union(*R[1:]) if len(R) > 1 else set()
                if mn in ("s_addk_i32", "s_mulk_i32", "s_cmov_b32", "s_cmov_b64"):
                    self.rd |= R[0]
                if "saveexec" in mn:
                    self.wr |= {"exec"}
                    self.rd |= {"exec"}
        else:
            raise ValueError("unknown instruction: " + text)


def is_s(r):
    return r[0] == "s" or r == "vcc"


def need_states(p, c):
    n = 0
    if p.kind == "valu":
        vw = {r for r in p.wr if r[0] in "va" and r != "vcc"}
        sw = {r for r in p.wr if is_s(r)}
        if vw:
            if c.kind == "mfma" and vw & c.rd:
                n = max(n, 2)
            if c.kind == "valu" and vw & c.rd:
                if c.is_perm or c.is_dpp:
                    n = max(n, 2)
                if c.is_rdlane:
                    n = max(n, 1)
                if p.is_trans or p.sdwa_dst:
                    n = max(n, 1)
        if sw:
            if c.kind in ("valu", "mfma") and sw & c.rd:
                n = max(n, 4 if c.mn.startswith("v_readlane") or c.mn.startswith("v_writelane") else 2)
            if c.kind == "vmem" and sw & c.rd:
                n = max(n, 5)
            if c.kind in ("salu", "smem") and sw & c.rd:
                n = max(n, 1)
    elif p.kind == "mfma":
        big = {4: 8, 8: 12}[p.passes]
        ovl = {4: 6, 8: 10}[p.passes]
        war = {4: 3, 8: 7}[p.passes]
        if c.kind == "mfma":
            if p.D & (c.A | c.B):
                n = max(n, big)
            if p.D & c.C and not (p.D == c.C and p.passes == c.passes):
                n = max(n, ovl)
            if p.D & c.D and not (p.D == c.C and p.passes == c.passes):
                n = max(n, ovl)
        elif c.kind in ("valu", "vmem", "ds"):
            if p.D & (c.rd | c.wr):
                n = max(n, big)
            if p.C & c.wr:
                n = max(n, war)
    elif p.kind == "vmem" and p.wide_data:
        if c.kind in ("valu", "mfma") and p.wide_data & c.wr:
            n = max(n, 2)
        elif p.wide_data & c.wr:
            n = max(n, 1)
    elif p.kind == "salu":
        if "m0" in p.wr and c.lds_dma:
            n = max(n, 1)
    return n


def cost(i):
    if i.kind == "mfma":
        return 4 * i.passes
    if i.kind == "valu":
        return 8 if i.is_trans else 4
    if i.kind == "ds":
        return 0
    return 0


class Asm:
    def __init__(self):
        self.ins = []
        self.vm = []
        self.lg = []
        self.cond = 0
        self.ncond = 0
        self.uid = 0
        self.track = True
        self.bg = []
        self.bg_every = 0
        self.bg_kinds = ("valu", "mfma")
        self._bgc = 0
        self._inbg = False
        self.nlabel = 0

    def _raw(self, text):
        i = Ins(text, self.cond)
        self.ins.append(i)
        return i

    def raw(self, text):
        for l in text.split("\n"):
            if l.strip():
                self._raw(l.strip())

    def _count_after(self, q, idx):
        return sum(1 for e in q[idx + 1:] if e["cond"] == 0 or (e["cond"] == self.cond))

    def _cap(self, q, idx, cap):
        while self._count_after(q, idx) > cap:
            idx += 1
        return idx

    def _wait(self, vm=None, lg=None):
        parts = []
        if vm is not None:
            assert vm <= 62
            parts.append(f"vmcnt({vm})")
        if lg is not None:
            assert lg <= 14
            parts.append(f"lgkmcnt({lg})")
        if parts:
            self._raw("s_waitcnt " + " ".join(parts))

    def _retire(self, q, idx):
        if self.cond == 0:
            del q[: idx + 1]
        else:
            for e in q[: idx + 1]:
                e["done_in"] = self.cond

    def _pending(self, e):
        return e.get("done_in") != self.cond or self.cond == 0 and e.get("done_in") is not None

    def __call__(self, text):
        for l in text.split("\n"):
            l = l.strip()
            if l:
                self.one(l)

    def one(self, text):
        if callable(text):
            text()
            return None
        i = Ins(text, self.cond)
        touched = i.rd | i.wr
        vmw = lgw = None
        vi = li = None
        for k in range(len(self.vm) - 1, -1, -1):
            e = self.vm[k]
            if e["regs"] & touched and not (self.cond and e.get("done_in") == self.cond):
                vi = k
                break
        for k in range(len(self.lg) - 1, -1, -1):
            e = self.lg[k]
            if e["regs"] & touched and not (self.cond and e.get("done_in") == self.cond):
                li = k
                break
        if vi is not None:
            vi = self._cap(self.vm, vi, 62)
            vmw = self._count_after(self.vm, vi)
            self._retire(self.vm, vi)
        if li is not None:
            if any(e["smem"] for e in self.lg):
                lgw = 0
                self._retire(self.lg, len(self.lg) - 1)
            else:
                li = self._cap(self.lg, li, 14)
                lgw = self._count_after(self.lg, li)
                self._retire(self.lg, li)
        self._wait(vmw, lgw)
        self.ins.append(i)
        self.uid += 1
        if i.kind == "vmem":
            self.vm.append(dict(regs=set(i.wr), cond=self.cond, id=self.uid))
        elif i.kind == "ds":
            self.lg.append(dict(regs=set(i.wr), cond=self.cond, smem=False, id=self.uid))
        elif i.kind == "smem":
            self.lg.append(dict(regs=set(i.wr), cond=self.cond, smem=True, id=self.uid))
        if self.bg_every and self.bg and not self._inbg and self.cond == 0:
            self._bgc += cost(i)
            if self._bgc >= self.bg_every and i.kind in self.bg_kinds:
                self._bgc = min(self._bgc - self.bg_every, self.bg_every // 2)
                self.bg_pop()
        return i

    def bg_pop(self, n=1):
        was = self._inbg
        self._inbg = True
        for _ in range(n):
            if self.bg:
                for x in self.bg.pop(0):
                    self.one(x)
        self._inbg = was

    def seq(self, items):
        for x in items:
            self.one(x)

    def bg_start(self, groups, every, kinds=("valu", "mfma")):
        self.bg = self.bg + list(groups)
        self.bg_every = every
        self.bg_kinds = kinds
        self._bgc = 0

    def bg_stop(self, flush=True):
        self.bg_every = 0
        if flush:
            self.bg_pop(len(self.bg))

    def mark(self):
        return self.uid

    def wait_vm(self, tok=None):
        tok = self.uid if tok is None else tok
        idx = None
        for k, e in enumerate(self.vm):
            if e["id"] <= tok:
                idx = k
        if idx is None:
            return
        idx = self._cap(self.vm, idx, 62)
        n = self._count_after(self.vm, idx)
        self._retire(self.vm, idx)
        self._wait(vm=n)

    def wait_lg(self, tok=None):
        tok = self.uid if tok is None else tok
        idx = None
        for k, e in enumerate(self.lg):
            if e["id"] <= tok:
                idx = k
        if idx is None:
            return
        if any(e["smem"] for e in self.lg):
            self._retire(self.lg, len(self.lg) - 1)
            self._wait(lg=0)
            return
        idx = self._cap(self.lg, idx, 14)
        n = self._count_after(self.lg, idx)
        self._retire(self.lg, idx)
        self._wait(lg=n)

    def barrier(self, vm_tok=False, lg=True):
        if vm_tok is not False:
            self.wait_vm(vm_tok)
        if lg:
            self.wait_lg()
        self._raw("s_barrier")

    def label(self, base="L"):
        self.nlabel += 1
        return f"{base}_{self.nlabel}"

    def begin_cond(self):
        assert self.cond == 0
        self.ncond += 1
        self.cond = self.ncond

    def end_cond(self):
        self.cond = 0
        for q in (self.vm, self.lg):
            for e in q:
                e.pop("done_in", None)

    def either(self, branch_else, fa, fb):
        lb, le = self.label("ALT"), self.label("ALTE")
        self._raw(f"{branch_else} {lb}")
        import copy
        vm0, lg0, uid0 = copy.deepcopy(self.vm), copy.deepcopy(self.lg), self.uid
        n0 = len(self.ins)
        fa()
        self._raw(f"s_branch {le}")
        vm1, lg1, uid1 = self.vm, self.lg, self.uid
        self.vm, self.lg, self.uid = vm0, lg0, uid0
        self._raw(f"{lb}:")
        n1 = len(self.ins)
        fb()
        assert len(self.vm) == len(vm1) and len(self.lg) == len(lg1) and self.uid == uid1
        self._raw(f"{le}:")
        self.ncond += 1
        for i in self.ins[n0:n1]:
            i.cond = self.ncond
        self.ncond += 1
        for i in self.ins[n1:]:
            i.cond = self.ncond

    def text(self):
        out = []
        for c in self.ins:
            if c.kind not in ("none", "nop", "wait"):
                need = 0
                dist = 0
                for p in reversed(out):
                    if dist >= 20:
                        break
                    n = need_states(p, c)
                    if n > dist:
                        need = max(need, n - dist)
                    if p.cond == 0 or p.cond == c.cond:
                        dist += p.states
                while need > 0:
                    k = min(need, 16)
                    out.append(Ins(f"s_nop {k - 1}", c.cond))
                    need -= k
            out.append(c)
        self.final = out
        return "\n".join(("" if i.kind == "none" else "    ") + i.text for i in out)

    def stats(self):
        from collections import Counter
        return Counter(i.kind for i in self.final)


def interleave(main, fill, ratio=None):
    out = []
    n, m = len(main), len(fill)
    j = 0
    for k, x in enumerate(main):
        out.append(x)
        tgt = min(m, (m * (k + 1) + n - 1) // n) if ratio is None else min(m, int(ratio * (k + 1)))
        while j < tgt:
            out.append(fill[j])
            j += 1
    out.extend(fill[j:])
    return out


def v(i, n=1):
    return f"v{i}" if n == 1 else f"v[{i}:{i + n - 1}]"


def a(i, n=1):
    return f"a{i}" if n == 1 else f"a[{i}:{i + n - 1}]"


def s(i, n=1):
    return f"s{i}" if n == 1 else f"s[{i}:{i + n - 1}]"
```

```python
import struct
from asmgen import *

A_Q, A_K, A_V, A_SH, A_SSMK, A_SSMD, A_BX, A_W1, A_W2, A_W3, A_W4, A_OUT, A_DBG, A_WS = [8 * i for i in range(14)]
CL_SZ = 86 * 2048
WS_CL = 0x000000
WS_Y = 0x600000
WS_W1P = 0x800000
WS_W2P = 0x880000
WS_W3P = 0x900000
WS_W4P = 0xA80000
WS_XC = 0xC00000
XC_CL = 68 * 1024
WS_SM = 0xE40000
SM_ST = 0
SM_ST2 = 0x10000
SM_FLAG = 0x50000
SM_LF = 0x58000
SM_ID = 0x58400
SM_GF = 0x58800
SM_ZEND = 0x59000
SM_XST = 0x5A000
SM_LF1 = 0x58C00
SM_ID2 = 0x59000
SM_E = 0x59800
SM_SZ = 0x5E000
WS_END = WS_SM + SM_SZ
WS_TRACE = 0x1800000
SRD3 = 0x20000
HUGE = 0x40000000


def fbits(x):
    return hex(struct.unpack("<I", struct.pack("<f", x))[0])


def srd(A, d, base, off, size):
    if off == 0:
        A(f"s_mov_b32 s{d}, s{base}")
        A(f"s_mov_b32 s{d + 1}, s{base + 1}")
    else:
        o = hex(off) if isinstance(off, int) else off
        A(f"s_add_u32 s{d}, s{base}, {o}")
        A(f"s_addc_u32 s{d + 1}, s{base + 1}, 0")
    A(f"s_mov_b32 s{d + 2}, {hex(size) if isinstance(size, int) else size}")
    A(f"s_mov_b32 s{d + 3}, {hex(SRD3)}")


def srdn(i):
    return f"s[{i}:{i + 3}]"


def unpack(A, lo, hi, src):
    A(f"v_lshlrev_b32 v{lo}, 16, v{src}")
    A(f"v_and_b32 v{hi}, 0xffff0000, v{src}")


class Tracer:
    def __init__(self, A, on, base=80):
        self.A, self.on, self.base, self.n, self.names = A, on, base, 0, []

    def __call__(self, name, real=False):
        if self.on:
            A = self.A
            if self.n:
                A(f"s_mov_b32 s{self.base + self.n - 1}, s100")
            A("s_memrealtime s[100:101]" if real else "s_memtime s[100:101]")
            self.n += 1
            self.names.append(name)

    def finish(self, wsreg, kidx, sd, vt, extra=None):
        if not self.on:
            return
        A = self.A
        A.wait_vm()
        self("end")
        self("rend", True)
        A(f"s_mov_b32 s{self.base + self.n - 1}, s100")
        assert self.base + self.n <= 100, self.n
        if wsreg is None:
            A(f"s_load_dwordx2 s[{sd}:{sd + 1}], s[0:1], {A_WS}")
            wsreg = sd
        srd(A, sd, wsreg, WS_TRACE + 0x100000 * kidx, 0x100000)
        A(f"v_lshrrev_b32 v{vt}, 6, v0")
        A(f"v_readfirstlane_b32 s100, v{vt}")
        A("s_lshl2_add_u32 s100, s2, s100")
        A("s_lshl_b32 s100, s100, 7")
        A("s_mov_b64 exec, 1")
        for k in range(self.n):
            A(f"v_mov_b32 v{vt}, s{self.base + k}")
            A(f"buffer_store_dword v{vt}, off, {srdn(sd)}, s100 offset:{4 * k}")
        if extra is not None:
            A(f"v_mov_b32 v{vt}, s{extra}")
            A(f"buffer_store_dword v{vt}, off, {srdn(sd)}, s100 offset:124")
        A("s_mov_b64 exec, -1")


def rowstats(A, nrows, src, S1, S2, TT, s_inv):
    R = range(nrows)
    for r in R:
        b, t = src + 8 * r, TT + 4 * r
        A(f"v_pk_add_f32 {v(t, 2)}, {v(b, 2)}, {v(b + 2, 2)}")
        A(f"v_pk_mul_f32 {v(t + 2, 2)}, {v(b, 2)}, {v(b, 2)}")
    for k in (4, 6):
        for r in R:
            b, t = src + 8 * r, TT + 4 * r
            A(f"v_pk_add_f32 {v(t, 2)}, {v(t, 2)}, {v(b + k, 2)}")
    for k in (2, 4, 6):
        for r in R:
            b, t = src + 8 * r, TT + 4 * r
            A(f"v_pk_fma_f32 {v(t + 2, 2)}, {v(b + k, 2)}, {v(b + k, 2)}, {v(t + 2, 2)}")
    for r in R:
        A(f"v_add_f32 v{S1 + r}, v{TT + 4 * r}, v{TT + 4 * r + 1}")
        A(f"v_add_f32 v{S2 + r}, v{TT + 4 * r + 2}, v{TT + 4 * r + 3}")
    for r in range(nrows, 4):
        A(f"v_mov_b32 v{S1 + r}, 0")
        A(f"v_mov_b32 v{S2 + r}, 0")
    for S in (S1, S2):
        A(f"v_permlane32_swap_b32 v{S}, v{S + 2}")
        A(f"v_permlane32_swap_b32 v{S + 1}, v{S + 3}")
    for S in (S1, S2):
        A(f"v_add_f32 v{S}, v{S}, v{S + 2}")
        A(f"v_add_f32 v{S + 1}, v{S + 1}, v{S + 3}")
    for S in (S1, S2):
        A(f"v_permlane16_swap_b32 v{S}, v{S + 1}")
    for S in (S1, S2):
        A(f"v_add_f32 v{S}, v{S}, v{S + 1}")
    for sh in (8, 4, 2, 1):
        for S in (S1, S2):
            A(f"v_add_f32_dpp v{S}, v{S}, v{S} row_ror:{sh} row_mask:0xf bank_mask:0xf")
    A(f"v_mul_f32 v{S1}, s{s_inv}, v{S1}")
    A(f"v_mul_f32 v{S1 + 1}, v{S1}, v{S1}")
    A(f"v_fma_f32 v{S2}, v{S2}, s{s_inv}, -v{S1 + 1}")
    A(f"v_max_f32 v{S2}, 0, v{S2}")
```

```python
import sys, os, json
sys.path.insert(0, os.path.dirname(os.path.abspath(__file__)))
from gen import kernel, HDR, NAME
from gen2 import parse
import importlib
def build(opts):
    ks = importlib.import_module(opts.get("mod", "ks"))
    B = ks.gen_ks(opts)
    txt = HDR + f"; @launch grid=(256,1,1) block=(256,1,1) lds={ks.KS_LDS}\n" + '.amdgcn_target "amdgcn-amd-amdhsa--gfx950"\n' + kernel(NAME, *B)
    if opts.get("trace"):
        txt += "\n; TRACE " + json.dumps([[], B[0].trace_names]) + "\n"
    return txt
if __name__ == "__main__":
    open(sys.argv[1], "w").write(build(parse(sys.argv[2:])))
```

```python
import re

REG_RE = re.compile(r'^(-?)(abs\()?([vas])(\d+)\)?$')
RNG_RE = re.compile(r'^(-?)([vas])\[(\d+):(\d+)\]$')

TRANS = ("v_exp_f32", "v_log_f32", "v_rcp_f32", "v_rsq_f32", "v_sqrt_f32", "v_sin_f32", "v_cos_f32")


def regs_of(op):
    op = op.strip()
    m = REG_RE.match(op)
    if m:
        return {m.group(3) + m.group(4)}
    m = RNG_RE.match(op)
    if m:
        return {m.group(2) + str(i) for i in range(int(m.group(3)), int(m.group(4)) + 1)}
    if op in ("vcc", "vcc_lo", "vcc_hi"):
        return {"vcc"}
    if op in ("exec", "exec_lo", "exec_hi"):
        return {"exec"}
    if op == "m0":
        return {"m0"}
    return set()


def split_ops(s):
    out, depth, cur = [], 0, ""
    for ch in s:
        if ch in "[(":
            depth += 1
        if ch in "])":
            depth -= 1
        if ch == "," and depth == 0:
            out.append(cur.strip())
            cur = ""
        else:
            cur += ch
    if cur.strip():
        out.append(cur.strip())
    return out


class Ins:
    __slots__ = ("text", "mn", "kind", "rd", "wr", "cond", "states", "passes", "A", "B", "C", "D",
                 "wide_data", "is_dpp", "is_trans", "is_perm", "is_rdlane", "lds_dma", "sgpr_rd", "label", "sdwa_dst")

    def __init__(self, text, cond):
        self.text = text
        self.cond = cond
        self.rd, self.wr = set(), set()
        self.states = 1
        self.passes = 0
        self.A = self.B = self.C = self.D = set()
        self.wide_data = set()
        self.is_dpp = self.is_trans = self.is_perm = self.is_rdlane = self.lds_dma = False
        self.sdwa_dst = False
        self.label = None
        t = text.split(";")[0].strip()
        if not t:
            self.kind, self.mn, self.states = "none", "", 0
            return
        if t.endswith(":") or t.startswith("."):
            self.kind, self.mn, self.states = "none", "", 0
            if t.endswith(":"):
                self.label = t[:-1]
            return
        parts = t.split(None, 1)
        mn = self.mn = parts[0]
        rest = parts[1] if len(parts) > 1 else ""
        ops = split_ops(rest)
        mods = ""
        if ops:
            last = ops[-1].split(None, 1)
            if len(last) > 1:
                ops[-1], mods = last[0], last[1]
        R = [regs_of(o) for o in ops]
        allr = set().union(*R) if R else set()
        if mn.startswith("v_mfma"):
            self.kind = "mfma"
            self.D, self.A, self.B, self.C = R[0], R[1], R[2], R[3]
            self.wr = set(R[0])
            self.rd = R[1] | R[2] | R[3]
            self.passes = 8 if "32x32" in mn else 4
        elif mn.startswith("v_"):
            self.kind = "valu"
            base = mn
            for sfx in ("_e32", "_e64", "_dpp", "_sdwa"):
                if base.endswith(sfx):
                    base = base[: -len(sfx)]
            self.is_dpp = mn.endswith("_dpp")
            self.is_trans = base in TRANS
            if mn.endswith("_sdwa") and "dst_sel:DWORD" not in mods:
                self.sdwa_dst = True
            if base == "v_nop":
                pass
            elif base.startswith("v_permlane") and "swap" in base:
                self.is_perm = True
                self.rd = set(allr)
                self.wr = set(allr)
            elif base.startswith("v_cmp"):
                assert not base.startswith("v_cmpx")
                self.wr = set(R[0])
                self.rd = set().union(*R[1:])
            elif base in ("v_add_co_u32", "v_sub_co_u32", "v_addc_co_u32", "v_subb_co_u32"):
                self.wr = R[0] | R[1]
                self.rd = set().union(*R[2:])
            else:
                self.wr = set(R[0])
                self.rd = set().union(*R[1:]) if len(R) > 1 else set()
                if base in ("v_fmac_f32", "v_dot2c_f32_bf16", "v_writelane_b32") or self.is_dpp or self.sdwa_dst:
                    self.rd |= R[0]
                if base in ("v_readlane_b32", "v_readfirstlane_b32"):
                    self.is_rdlane = True
        elif mn.startswith("ds_"):
            self.kind = "ds"
            if mn.startswith("ds_read") or mn.startswith("ds_bpermute") or mn.startswith("ds_permute") or mn.startswith("ds_swizzle"):
                self.wr = set(R[0])
                self.rd = set().union(*R[1:])
            else:
                self.rd = set(allr)
        elif mn.startswith("buffer_") or mn.startswith("global_"):
            self.kind = "vmem"
            is_lds = " lds" in (" " + mods) or "_lds_" in mn
            if mn in ("buffer_wbl2", "buffer_inv"):
                pass
            elif is_lds:
                self.lds_dma = True
                self.rd = set(allr) | {"m0"}
            elif "_load_" in mn:
                self.wr = set(R[0])
                self.rd = set().union(*R[1:])
            elif "_atomic_" in mn and "sc0" in mods:
                self.wr = set(R[0])
                self.rd = set(allr)
            else:
                self.rd = set(allr)
                if mn.endswith("x4") or mn.endswith("x3"):
                    self.wide_data = R[0] if mn.startswith("buffer_") else R[1]
        elif mn.startswith("s_load") or mn.startswith("s_buffer_load") or mn in ("s_memtime", "s_memrealtime"):
            self.kind = "smem"
            self.wr = set(R[0])
            self.rd = set().union(*R[1:]) if len(R) > 1 else set()
        elif mn == "s_nop":
            self.kind = "nop"
            self.states = int(ops[0]) + 1
        elif mn == "s_waitcnt":
            self.kind = "wait"
        elif mn.startswith("s_"):
            self.kind = "salu"
            if mn.startswith("s_cmp") or mn.startswith("s_bitcmp") or mn.startswith("s_cbranch") or mn in (
                    "s_branch", "s_barrier", "s_endpgm", "s_sleep", "s_setprio"):
                self.rd = set(allr)
                if "vcc" in mn:
                    self.rd |= {"vcc"}
            else:
                self.wr = set(R[0]) if R else set()
                self.rd = set().union(*R[1:]) if len(R) > 1 else set()
                if mn in ("s_addk_i32", "s_mulk_i32", "s_cmov_b32", "s_cmov_b64"):
                    self.rd |= R[0]
                if "saveexec" in mn:
                    self.wr |= {"exec"}
                    self.rd |= {"exec"}
        else:
            raise ValueError("unknown instruction: " + text)


def is_s(r):
    return r[0] == "s" or r == "vcc"


def need_states(p, c):
    n = 0
    if p.kind == "valu":
        vw = {r for r in p.wr if r[0] in "va" and r != "vcc"}
        sw = {r for r in p.wr if is_s(r)}
        if vw:
            if c.kind == "mfma" and vw & c.rd:
                n = max(n, 2)
            if c.kind == "valu" and vw & c.rd:
                if c.is_perm or c.is_dpp:
                    n = max(n, 2)
                if c.is_rdlane:
                    n = max(n, 1)
                if p.is_trans or p.sdwa_dst:
                    n = max(n, 1)
        if sw:
            if c.kind in ("valu", "mfma") and sw & c.rd:
                n = max(n, 4 if c.mn.startswith("v_readlane") or c.mn.startswith("v_writelane") else 2)
            if c.kind == "vmem" and sw & c.rd:
                n = max(n, 5)
            if c.kind in ("salu", "smem") and sw & c.rd:
                n = max(n, 1)
    elif p.kind == "mfma":
        big = {4: 8, 8: 12}[p.passes]
        ovl = {4: 6, 8: 10}[p.passes]
        war = {4: 3, 8: 7}[p.passes]
        if c.kind == "mfma":
            if p.D & (c.A | c.B):
                n = max(n, big)
            if p.D & c.C and not (p.D == c.C and p.passes == c.passes):
                n = max(n, ovl)
            if p.D & c.D and not (p.D == c.C and p.passes == c.passes):
                n = max(n, ovl)
        elif c.kind in ("valu", "vmem", "ds"):
            if p.D & (c.rd | c.wr):
                n = max(n, big)
            if p.C & c.wr:
                n = max(n, war)
    elif p.kind == "vmem" and p.wide_data:
        if c.kind in ("valu", "mfma") and p.wide_data & c.wr:
            n = max(n, 2)
        elif p.wide_data & c.wr:
            n = max(n, 1)
    elif p.kind == "salu":
        if "m0" in p.wr and c.lds_dma:
            n = max(n, 1)
    return n


def cost(i):
    if i.kind == "mfma":
        return 4 * i.passes
    if i.kind == "valu":
        return 8 if i.is_trans else 4
    if i.kind == "nop":
        return 4 * i.states
    if i.kind == "none":
        return 0
    return 4


class Asm:
    def __init__(self):
        self.ins = []
        self.vm = []
        self.lg = []
        self.cond = 0
        self.ncond = 0
        self.uid = 0
        self.track = True
        self.bg = []
        self.bg_every = 0
        self.bg_kinds = ("valu", "mfma")
        self._bgc = 0
        self._inbg = False
        self._room = 0
        self._used = 0
        self._mf = True
        self._vc = 0
        self.bg_valu = 4
        self.bg_resv = 0
        self._fill_after = False
        self.nlabel = 0
        self.cold = []

    def _raw(self, text):
        i = Ins(text, self.cond)
        self.ins.append(i)
        return i

    def raw(self, text):
        for l in text.split("\n"):
            if l.strip():
                self._raw(l.strip())

    def _count_after(self, q, idx):
        return sum(1 for e in q[idx + 1:] if e["cond"] == 0 or (e["cond"] == self.cond))

    def _cap(self, q, idx, cap):
        while self._count_after(q, idx) > cap:
            idx += 1
        return idx

    def _wait(self, vm=None, lg=None):
        parts = []
        if vm is not None:
            assert vm <= 62
            parts.append(f"vmcnt({vm})")
        if lg is not None:
            assert lg <= 14
            parts.append(f"lgkmcnt({lg})")
        if parts:
            self._raw("s_waitcnt " + " ".join(parts))

    def _retire(self, q, idx):
        if self.cond == 0:
            del q[: idx + 1]
        else:
            for e in q[: idx + 1]:
                e["done_in"] = self.cond

    def _pending(self, e):
        return e.get("done_in") != self.cond or self.cond == 0 and e.get("done_in") is not None

    def __call__(self, text):
        for l in text.split("\n"):
            l = l.strip()
            if l:
                self.one(l)

    def one(self, text):
        if callable(text):
            text()
            return None
        i = Ins(text, self.cond)
        if i.kind == "mfma" and self._fill_after and not self._inbg and self.cond == 0:
            self._fill_after = False
            if self.bg_every and self.bg:
                self._bg_items(self._room - self.bg_resv)
        touched = i.rd | i.wr
        vmw = lgw = None
        vi = li = None
        for k in range(len(self.vm) - 1, -1, -1):
            e = self.vm[k]
            if e["regs"] & touched and not (self.cond and e.get("done_in") == self.cond):
                vi = k
                break
        for k in range(len(self.lg) - 1, -1, -1):
            e = self.lg[k]
            if e["regs"] & touched and not (self.cond and e.get("done_in") == self.cond):
                li = k
                break
        if vi is not None:
            vi = self._cap(self.vm, vi, 62)
            vmw = self._count_after(self.vm, vi)
            self._retire(self.vm, vi)
        if li is not None:
            if any(e["smem"] for e in self.lg):
                lgw = 0
                self._retire(self.lg, len(self.lg) - 1)
            else:
                li = self._cap(self.lg, li, 14)
                lgw = self._count_after(self.lg, li)
                self._retire(self.lg, li)
        self._wait(vmw, lgw)
        self.ins.append(i)
        self.uid += 1
        if i.kind == "vmem":
            self.vm.append(dict(regs=set(i.wr), cond=self.cond, id=self.uid))
        elif i.kind == "ds":
            self.lg.append(dict(regs=set(i.wr), cond=self.cond, smem=False, id=self.uid))
        elif i.kind == "smem":
            self.lg.append(dict(regs=set(i.wr), cond=self.cond, smem=True, id=self.uid))
        if not self._inbg and self.cond == 0:
            self._clock(i)
        return i

    def _clock(self, i):
        c = cost(i)
        if i.kind == "mfma":
            self._bgc += max(c, self._used)
            self._room, self._used = c - 8, 8
        else:
            self._room -= c
            self._used += c
            if self._room < 0 and not self._mf:
                self._bgc += c
        if not (self.bg_every and self.bg):
            return
        if i.kind == "mfma":
            self._fill_after = True
        elif not self._mf and i.kind == "valu":
            self._vc += 1
            if self._vc >= self.bg_valu:
                self._vc = 0
                self._bg_items(4)

    def _bg_items(self, room):
        self._inbg = True
        while self.bg and room > 0:
            g = self.bg[0]
            if not g:
                self.bg.pop(0)
                continue
            x = g[0]
            if not callable(x) and x.startswith("buffer_") :
                if self._bgc < self.bg_every:
                    break
                self._bgc = 0
            g.pop(0)
            n0 = len(self.ins)
            self.one(x)
            spent = sum(cost(y) for y in self.ins[n0:])
            room -= spent
            self._room -= spent
            self._used += spent
        while self.bg and self.bg[0] and callable(self.bg[0][0]) and getattr(self.bg[0][0], "free", False):
            self.one(self.bg[0].pop(0))
        self._inbg = False

    def bg_pop(self, n=1):
        was = self._inbg
        self._inbg = True
        for _ in range(n):
            while self.bg and not self.bg[0]:
                self.bg.pop(0)
            if self.bg:
                for x in self.bg.pop(0):
                    self.one(x)
        self._inbg = was

    def seq(self, items):
        for x in items:
            self.one(x)

    def bg_start(self, groups, every, kinds=("valu", "mfma")):
        self.bg = self.bg + [list(g) for g in groups]
        self.bg_every = every
        self.bg_mode(kinds)
        self._bgc = every

    def bg_mode(self, kinds):
        self._mf = "valu" not in kinds

    def bg_stop(self, flush=True):
        self.bg_every = 0
        if flush:
            self.bg_pop(len(self.bg))
            self.bg = []

    def mark(self):
        return self.uid

    def wait_vm(self, tok=None):
        tok = self.uid if tok is None else tok
        idx = None
        for k, e in enumerate(self.vm):
            if e["id"] <= tok:
                idx = k
        if idx is None:
            return
        idx = self._cap(self.vm, idx, 62)
        n = self._count_after(self.vm, idx)
        self._retire(self.vm, idx)
        self._wait(vm=n)

    def wait_lg(self, tok=None):
        tok = self.uid if tok is None else tok
        idx = None
        for k, e in enumerate(self.lg):
            if e["id"] <= tok:
                idx = k
        if idx is None:
            return
        if any(e["smem"] for e in self.lg):
            self._retire(self.lg, len(self.lg) - 1)
            self._wait(lg=0)
            return
        idx = self._cap(self.lg, idx, 14)
        n = self._count_after(self.lg, idx)
        self._retire(self.lg, idx)
        self._wait(lg=n)

    def barrier(self, vm_tok=False, lg=True):
        if vm_tok is not False:
            self.wait_vm(vm_tok)
        if lg:
            self.wait_lg()
        self._raw("s_barrier")

    def label(self, base="L"):
        self.nlabel += 1
        return f"{base}_{self.nlabel}"

    def begin_cond(self):
        assert self.cond == 0
        self.ncond += 1
        self.cond = self.ncond

    def end_cond(self):
        self.cond = 0
        for q in (self.vm, self.lg):
            for e in q:
                e.pop("done_in", None)

    def either(self, branch_else, fa, fb):
        lb, le = self.label("ALT"), self.label("ALTE")
        self._raw(f"{branch_else} {lb}")
        import copy
        vm0, lg0, uid0 = copy.deepcopy(self.vm), copy.deepcopy(self.lg), self.uid
        n0 = len(self.ins)
        fa()
        self._raw(f"s_branch {le}")
        vm1, lg1, uid1 = self.vm, self.lg, self.uid
        self.vm, self.lg, self.uid = vm0, lg0, uid0
        self._raw(f"{lb}:")
        n1 = len(self.ins)
        fb()
        assert len(self.vm) == len(vm1) and len(self.lg) == len(lg1) and self.uid == uid1
        self._raw(f"{le}:")
        self.ncond += 1
        for i in self.ins[n0:n1]:
            i.cond = self.ncond
        self.ncond += 1
        for i in self.ins[n1:]:
            i.cond = self.ncond

    def rare(self, branch_else, fa, fb):
        lb, le = self.label("ALT"), self.label("ALTE")
        self._raw(f"{branch_else} {lb}")
        import copy
        vm0, lg0, uid0 = copy.deepcopy(self.vm), copy.deepcopy(self.lg), self.uid
        n0 = len(self.ins)
        fa()
        pre = [i.text for i in self.ins[n0:]]
        self._raw(f"{le}:")
        vm1, lg1, uid1, keep = self.vm, self.lg, self.uid, self.ins
        self.vm, self.lg, self.uid, self.ins = vm0, lg0, uid0, []
        self._raw(f"{lb}:")
        self._raw("s_nop 4")
        fb()
        self._raw("s_nop 1")
        self._raw(f"s_branch {le}")
        assert len(self.vm) == len(vm1) and len(self.lg) == len(lg1) and self.uid == uid1
        assert all(i.kind in ("vmem", "wait", "none", "nop", "salu") for i in self.ins)
        self.cold += self.ins
        self.vm, self.lg, self.uid, self.ins = vm1, lg1, uid1, keep

    def cold_block(self, branch, fn):
        lb, le = self.label("COLD"), self.label("COLDE")
        self._raw(f"{branch} {lb}")
        self._raw(f"{le}:")
        keep, self.ins = self.ins, []
        self._raw(f"{lb}:")
        self._raw("s_nop 4")
        fn()
        self._raw("s_nop 4")
        self._raw(f"s_branch {le}")
        self.cold += self.ins
        self.ins = keep

    def flush_cold(self):
        self.ins += self.cold
        self.cold = []

    def text(self):
        out = []
        for c in self.ins:
            if c.kind not in ("none", "nop", "wait"):
                need = 0
                dist = 0
                for p in reversed(out):
                    if dist >= 20:
                        break
                    n = need_states(p, c)
                    if n > dist:
                        need = max(need, n - dist)
                    if p.cond == 0 or p.cond == c.cond:
                        dist += p.states
                while need > 0:
                    k = min(need, 16)
                    out.append(Ins(f"s_nop {k - 1}", c.cond))
                    need -= k
            out.append(c)
        self.final = out
        return "\n".join(("" if i.kind == "none" else "    ") + i.text for i in out)

    def align_runs(self, minrun=8):
        import subprocess, tempfile, os
        real = [i for i in self.final if i.kind != "none"]
        src = '.amdgcn_target "amdgcn-amd-amdhsa--gfx950"\n.text\nkb_kernel:\n' + "\n".join(i.text for i in self.final) + "\n"
        d = tempfile.mkdtemp()
        open(d + "/a.s", "w").write(src)
        subprocess.run(["clang", "-x", "assembler", "-target", "amdgcn-amd-amdhsa", "-mcpu=gfx950", "-c", d + "/a.s", "-o", d + "/a.o"], check=True)
        lst = subprocess.run(["llvm-objdump", "-d", "--mcpu=gfx950", d + "/a.o"], capture_output=True, text=True, check=True).stdout
        sizes = [4 * len(l.split("//")[1].split(":")[1].split()) for l in lst.splitlines() if "//" in l]
        assert len(sizes) == len(real), (len(sizes), len(real))
        size = {id(i): z for i, z in zip(real, sizes)}
        out, off, k, n = [], 0, 0, 0
        F = self.final
        while k < len(F):
            i = F[k]
            if i.kind == "valu" and size[id(i)] == 8 and not i.is_trans:
                e = k
                while e < len(F) and F[e].kind == "valu" and size[id(F[e])] == 8 and not F[e].is_trans:
                    e += 1
                if e - k >= minrun and off % 8:
                    out.append(Ins("s_nop 0", i.cond))
                    off += 4
                    n += 1
                out += F[k:e]
                off += 8 * (e - k)
                k = e
                continue
            out.append(i)
            off += size.get(id(i), 0)
            k += 1
        self.final = out
        return "\n".join(("" if i.kind == "none" else "    ") + i.text for i in out)

    def stats(self):
        from collections import Counter
        return Counter(i.kind for i in self.final)


def free(fn):
    fn.free = True
    return fn


def interleave(main, fill, ratio=None):
    out = []
    n, m = len(main), len(fill)
    j = 0
    for k, x in enumerate(main):
        out.append(x)
        tgt = min(m, (m * (k + 1) + n - 1) // n) if ratio is None else min(m, int(ratio * (k + 1)))
        while j < tgt:
            out.append(fill[j])
            j += 1
    out.extend(fill[j:])
    return out


def v(i, n=1):
    return f"v{i}" if n == 1 else f"v[{i}:{i + n - 1}]"


def a(i, n=1):
    return f"a{i}" if n == 1 else f"a[{i}:{i + n - 1}]"


def s(i, n=1):
    return f"s{i}" if n == 1 else f"s[{i}:{i + n - 1}]"
```

```python
import struct
from asmgen import *

A_Q, A_K, A_V, A_SH, A_SSMK, A_SSMD, A_BX, A_W1, A_W2, A_W3, A_W4, A_OUT, A_DBG, A_WS = [8 * i for i in range(14)]
CL_SZ = 86 * 2048
WS_CL = 0x000000
WS_Y = 0x600000
WS_W1P = 0x800000
WS_W2P = 0x880000
WS_W3P = 0x900000
WS_W4P = 0xA80000
WS_XC = 0xC00000
XC_CL = 68 * 1024
WS_SM = 0xE40000
SM_ST = 0
SM_ST2 = 0x10000
SM_FLAG = 0x50000
SM_ST2B = 0x60000
SM_LF = 0x58000
SM_ID = 0x58400
SM_GF = 0x58800
SM_ZEND = 0x59000
SM_XST = 0x5A000
SM_LF1 = 0x58C00
SM_ID2 = 0x59000
SM_E = 0x59800
SM_ID3 = 0x59900
SM_SZ = 0xE0000
WS_END = WS_SM + SM_SZ
WS_TRACE = 0x1800000
SRD3 = 0x20000
HUGE = 0x40000000


def fbits(x):
    return hex(struct.unpack("<I", struct.pack("<f", x))[0])


def srd(A, d, base, off, size):
    if off == 0:
        A(f"s_mov_b32 s{d}, s{base}")
        A(f"s_mov_b32 s{d + 1}, s{base + 1}")
    else:
        o = hex(off) if isinstance(off, int) else off
        A(f"s_add_u32 s{d}, s{base}, {o}")
        A(f"s_addc_u32 s{d + 1}, s{base + 1}, 0")
    A(f"s_mov_b32 s{d + 2}, {hex(size) if isinstance(size, int) else size}")
    A(f"s_mov_b32 s{d + 3}, {hex(SRD3)}")


def srdn(i):
    return f"s[{i}:{i + 3}]"


def unpack(A, lo, hi, src):
    A(f"v_lshlrev_b32 v{lo}, 16, v{src}")
    A(f"v_and_b32 v{hi}, 0xffff0000, v{src}")


class Tracer:
    def __init__(self, A, on, base=80):
        self.A, self.on, self.base, self.n, self.names = A, on, base, 0, []
        self.allreal = on == 2

    def __call__(self, name, real=False):
        if self.on:
            A = self.A
            if self.n:
                A(f"s_mov_b32 s{self.base + self.n - 1}, s100")
            A("s_memrealtime s[100:101]" if (real or self.allreal) else "s_memtime s[100:101]")
            self.n += 1
            self.names.append(name)

    def finish(self, wsreg, kidx, sd, vt, extra=None, swave=None):
        if not self.on:
            return
        A = self.A
        A.wait_vm()
        self("end")
        self("rend", True)
        A(f"s_mov_b32 s{self.base + self.n - 1}, s100")
        assert self.base + self.n <= 100, self.n
        if wsreg is None:
            A(f"s_load_dwordx2 s[{sd}:{sd + 1}], s[0:1], {A_WS}")
            wsreg = sd
        srd(A, sd, wsreg, WS_TRACE + 0x100000 * kidx, 0x100000)
        if swave is None:
            A(f"v_lshrrev_b32 v{vt}, 6, v0")
            A(f"v_readfirstlane_b32 s100, v{vt}")
        else:
            A(f"s_mov_b32 s100, s{swave}")
        A("s_lshl2_add_u32 s100, s2, s100")
        A("s_lshl_b32 s100, s100, 7")
        A("s_mov_b64 exec, 1")
        for k in range(self.n):
            A(f"v_mov_b32 v{vt}, s{self.base + k}")
            A(f"buffer_store_dword v{vt}, off, {srdn(sd)}, s100 offset:{4 * k}")
        if extra is not None:
            A(f"v_mov_b32 v{vt}, s{extra}")
            A(f"buffer_store_dword v{vt}, off, {srdn(sd)}, s100 offset:124")
        A("s_mov_b64 exec, -1")


def rowstats(A, nrows, src, S1, S2, TT, s_inv):
    R = range(nrows)
    for r in R:
        b, t = src + 8 * r, TT + 4 * r
        A(f"v_pk_add_f32 {v(t, 2)}, {v(b, 2)}, {v(b + 2, 2)}")
        A(f"v_pk_mul_f32 {v(t + 2, 2)}, {v(b, 2)}, {v(b, 2)}")
    for k in (4, 6):
        for r in R:
            b, t = src + 8 * r, TT + 4 * r
            A(f"v_pk_add_f32 {v(t, 2)}, {v(t, 2)}, {v(b + k, 2)}")
    for k in (2, 4, 6):
        for r in R:
            b, t = src + 8 * r, TT + 4 * r
            A(f"v_pk_fma_f32 {v(t + 2, 2)}, {v(b + k, 2)}, {v(b + k, 2)}, {v(t + 2, 2)}")
    for r in R:
        A(f"v_add_f32 v{S1 + r}, v{TT + 4 * r}, v{TT + 4 * r + 1}")
        A(f"v_add_f32 v{S2 + r}, v{TT + 4 * r + 2}, v{TT + 4 * r + 3}")
    for r in range(nrows, 4):
        A(f"v_mov_b32 v{S1 + r}, 0")
        A(f"v_mov_b32 v{S2 + r}, 0")
    for S in (S1, S2):
        A(f"v_permlane32_swap_b32 v{S}, v{S + 2}")
        A(f"v_permlane32_swap_b32 v{S + 1}, v{S + 3}")
    for S in (S1, S2):
        A(f"v_add_f32 v{S}, v{S}, v{S + 2}")
        A(f"v_add_f32 v{S + 1}, v{S + 1}, v{S + 3}")
    for S in (S1, S2):
        A(f"v_permlane16_swap_b32 v{S}, v{S + 1}")
    for S in (S1, S2):
        A(f"v_add_f32 v{S}, v{S}, v{S + 1}")
    for sh in (8, 4, 2, 1):
        for S in (S1, S2):
            A(f"v_add_f32_dpp v{S}, v{S}, v{S} row_ror:{sh} row_mask:0xf bank_mask:0xf")
    A(f"v_mul_f32 v{S1}, s{s_inv}, v{S1}")
    A(f"v_mul_f32 v{S1 + 1}, v{S1}, v{S1}")
    A(f"v_fma_f32 v{S2}, v{S2}, s{s_inv}, -v{S1 + 1}")
    A(f"v_max_f32 v{S2}, 0, v{S2}")
```

```python
import sys, os, json
sys.path.insert(0, os.path.dirname(os.path.abspath(__file__)))
from gen import kernel, HDR, NAME
from gen2 import parse
import importlib
DOC = """;
;   7. out = h + x1 + g @ w4
"""


def build(opts):
    ks = importlib.import_module(opts.get("mod", "ks"))
    B = ks.gen_ks(opts)
    txt = HDR + f"; @launch grid=(256,1,1) block=(256,1,1) lds={ks.KS_LDS}\n" + DOC + '.amdgcn_target "amdgcn-amd-amdhsa--gfx950"\n' + kernel(NAME, *B)
    if opts.get("trace"):
        txt += "\n; TRACE " + json.dumps([[], B[0].trace_names]) + "\n"
    return txt
if __name__ == "__main__":
    open(sys.argv[1], "w").write(build(parse(sys.argv[2:])))
```

```python
import sys, re; sys.path.insert(0, "dev")
from asmgen import Ins, need_states
L = [l.strip() for l in open(sys.argv[1])]
i0 = next(i for i, l in enumerate(L) if l.endswith("_kernel:"))
i1 = next(i for i, l in enumerate(L) if l.startswith(".section"))
ins = [Ins(l, 0) for l in L[i0+1:i1] if l and not l.startswith(";")]
labels = {x.label: k for k, x in enumerate(ins) if x.label}
pred = {k: [] for k in range(len(ins))}; succ = {k: [] for k in range(len(ins))}
def edge(a, b): pred[b].append(a); succ[a].append(b)
for k, x in enumerate(ins):
    if x.mn == "s_branch": edge(k, labels[x.text.split()[1]])
    elif x.mn.startswith("s_cbranch"):
        edge(k, labels[x.text.split()[1]])
        if k + 1 < len(ins): edge(k, k + 1)
    elif x.mn == "s_endpgm": pass
    elif k + 1 < len(ins): edge(k, k + 1)
bad = 0
for k, c in enumerate(ins):
    if c.kind in ("none", "nop", "wait"): continue
    stack = [(p, 0) for p in pred[k]]; seen = set()
    while stack:
        p, d = stack.pop()
        if (p, d) in seen or d >= 20: continue
        seen.add((p, d))
        n = need_states(ins[p], c)
        if n > d: bad += 1; print("SHORT", n, d, "|", ins[p].text, "->", c.text)
        for q in pred[p]: stack.append((q, d + ins[p].states))
print("hazard violations", bad)
sys.setrecursionlimit(100000)
seen = set(); nb = 0
stack = [(0, (), ())]
while stack:
    k, vm, lg = stack.pop()
    while True:
        key = (k, vm, lg)
        if ins[k].label or len(pred[k]) > 1:
            if key in seen: break
            seen.add(key)
        x = ins[k]
        if x.kind == "wait":
            m = re.search(r"vmcnt\((\d+)\)", x.text)
            if m: n = int(m.group(1)); vm = vm[len(vm) - n:] if n and len(vm) > n else (vm if n else ())
            m = re.search(r"lgkmcnt\((\d+)\)", x.text)
            if m:
                n = int(m.group(1))
                if n == 0: lg = ()
                elif not any(s for s, _ in lg): lg = lg[len(lg) - n:] if len(lg) > n else lg
        elif x.kind != "none":
            t = x.rd | x.wr
            for e in vm:
                if e & t and not (x.kind == "vmem" and not (e & x.rd)): nb += 1; print("VM not waited:", x.text)
            for s, e in lg:
                if e & t and not (x.kind == "ds" and not s and not (e & x.rd)): nb += 1; print("LGKM not waited:", x.text)
            if x.kind == "vmem": vm = (vm + (frozenset(x.wr),))[-63:]
            elif x.kind == "ds": lg = (lg + ((False, frozenset(x.wr)),))[-40:]
            elif x.kind == "smem": lg = lg + ((True, frozenset(x.wr)),)
        s = succ[k]
        if not s: break
        for q in s[1:]: stack.append((q, vm, lg))
        k = s[0]
print("wait violations", nb, "states", len(seen))
```
